```python
import torch

def _softmax(x, axis=-1):
    return torch.softmax(x, dim=axis)

def _gelu(x):
    return torch.nn.functional.gelu(x, approximate='tanh')

def _silu(x):
    return torch.nn.functional.silu(x)

def _sigmoid(x):
    return torch.sigmoid(x)

def _layernorm(x, axis=-1, eps=1e-05):
    m = x.mean(dim=axis, keepdim=True)
    v = x.var(dim=axis, keepdim=True, unbiased=False)
    return (x - m) / torch.sqrt(v + eps)

def _scatter_add(tgt, idx, src, axis=0):
    return tgt.clone().index_add_(axis, idx, src)

def _segment_sum(src, seg, n):
    out = torch.zeros((n,) + src.shape[1:], dtype=src.dtype)
    return out.index_add_(0, seg, src)

def _pad(x, pw):
    flat = tuple((v for pair in reversed(pw) for v in pair))
    return torch.nn.functional.pad(x, flat)
kernel_name = 'gated_mix__memory_aug_recurrent_mem_tr__moe_arch_mod__prompt'

def setup_inputs():

    _w = lambda a: (lambda t: t.to(torch.bfloat16) if t.is_floating_point() else t)(torch.as_tensor(a))

    def _A_setup():
        B, S, Dm = (1, 2048, 640)
        H, Dh = (32, 192)
        M, seg = (8, 32)
        seg = min(seg, S)
        S = S // seg * seg
        return {'x': _w((lambda *s: torch.randn(*s, dtype=torch.bfloat16) * 0.05)(B, S, Dm)), 'mem0': _w((lambda *s: torch.randn(*s, dtype=torch.bfloat16) * 0.8)(B, M, Dm)), 'Wq': _w((lambda *s: torch.randn(*s, dtype=torch.bfloat16) * 3.2)(Dm, H, Dh) * Dm ** (-0.5)), 'Wk': _w((lambda *s: torch.randn(*s, dtype=torch.bfloat16) * 3.2)(Dm, H, Dh) * Dm ** (-0.5)), 'Wv': _w((lambda *s: torch.randn(*s, dtype=torch.bfloat16) * 0.8)(Dm, H, Dh) * Dm ** (-0.5)), 'Wo': _w((lambda *s: torch.randn(*s, dtype=torch.bfloat16) * 0.8)(H, Dh, Dm) * (H * Dh) ** (-0.5)), 'seg_len': seg}
    _A_in = _A_setup()

    def _B_setup():
        B, S, D, F, C = (1, 2048, 640, 1536, 8)
        return {'x': _w((lambda *s: torch.randn(*s, dtype=torch.bfloat16) * 0.05)(B, S, D)), 'w_r': _w((lambda *s: torch.randn(*s, dtype=torch.bfloat16) * 1.6)(D)), 'w_gate': _w((lambda *s: torch.randn(*s, dtype=torch.bfloat16) * 0.2)(D, F)), 'w_up': _w((lambda *s: torch.randn(*s, dtype=torch.bfloat16) * 0.2)(D, F)), 'w_down': _w((lambda *s: torch.randn(*s, dtype=torch.bfloat16) * 0.2)(F, D))}
    _B_in = _B_setup()
    return {'A_x': _A_in['x'], 'A_mem0': _A_in['mem0'], 'A_Wq': _A_in['Wq'], 'A_Wk': _A_in['Wk'], 'A_Wv': _A_in['Wv'], 'A_Wo': _A_in['Wo'], 'A_seg_len': _A_in['seg_len'], 'B_x': _B_in['x'], 'B_w_r': _B_in['w_r'], 'B_w_gate': _B_in['w_gate'], 'B_w_up': _B_in['w_up'], 'B_w_down': _B_in['w_down'], 'gate_w': _w((lambda *s: torch.randn(*s, dtype=torch.bfloat16) * 0.05)(640) * 16.0)}

def reference(A_x, A_mem0, A_Wq, A_Wk, A_Wv, A_Wo, A_seg_len, B_x, B_w_r, B_w_gate, B_w_up, B_w_down, gate_w):

    def _A_ref(x, mem0, Wq, Wk, Wv, Wo, seg_len):
        B, S, Dm = x.shape
        H, Dh = (Wq.shape[1], Wq.shape[2])
        M = mem0.shape[1]
        scale = Dh ** (-0.5)
        n_seg = S // seg_len
        L = M + seg_len
        idx = torch.arange(L)
        mask = (idx[:, None] < M) | (idx[:, None] >= idx[None, :])
        mem = mem0
        outs = []
        for s in range(n_seg):
            xs = x[:, s * seg_len:(s + 1) * seg_len, :].clone()
            h = torch.concatenate([mem, xs], axis=1)
            q = torch.einsum('btd,dhe->bhte', h, Wq)
            k = torch.einsum('btd,dhe->bhte', h, Wk)
            v = torch.einsum('btd,dhe->bhte', h, Wv)
            scores = torch.einsum('bhqe,bhke->bhqk', q, k) * scale
            scores = torch.where(mask[None, None], scores, -1000000000.0)
            p = _softmax(scores, axis=-1)
            o = torch.einsum('bhqk,bhke->bhqe', p, v)
            o = torch.einsum('bhte,hed->btd', o, Wo)
            mem = o[:, :M, :].clone()
            outs.append(o[:, M:, :])
        return torch.concatenate(outs, axis=1)

    def _B_ref(x, w_r, w_gate, w_up, w_down):
        B, S, D = x.shape
        C = 8
        r = x @ w_r
        idx = torch.argsort(-r, axis=-1)[:, :C]
        idx_e = (lambda x, n, axis: torch.repeat_interleave(x, n, dim=axis))(idx.reshape(B, C, 1), D, axis=2)
        x_sel = (lambda x, i, axis: torch.take_along_dim(x, i, dim=axis))(x, idx_e, axis=1)
        g = _silu(x_sel @ w_gate)
        u = x_sel @ w_up
        y = g * u @ w_down
        r_sel = _sigmoid((lambda x, i, axis: torch.take_along_dim(x, i, dim=axis))(r, idx, axis=1))
        y = y * r_sel.reshape(B, C, 1)
        b_off = (torch.arange(B) * S).reshape(B, 1)
        flat_idx = (idx + b_off).reshape(B * C)
        zero = (x * 0.0).reshape(B * S, D)
        upd = _scatter_add(zero, flat_idx, y.reshape(B * C, D), axis=0)
        return x + upd.reshape(B, S, D)
    x = A_x
    g = _sigmoid((x * gate_w).sum(-1, keepdims=True))
    a = _A_ref(x, A_mem0, A_Wq, A_Wk, A_Wv, A_Wo, A_seg_len)
    b = _B_ref(x, B_w_r, B_w_gate, B_w_up, B_w_down)
    return g * a + (1 - g) * b
```

```python
import re

class Asm:
    def __init__(self):
        self.lines = []
        self._uid = 0
    def __call__(self, s=""):
        for l in s.split("\n"):
            l = l.rstrip()
            if l.strip() == "":
                continue
            if not l.startswith(";") and not re.match(r"^[\w.$]+:", l.strip()):
                l = "    " + l.strip()
            else:
                l = l.strip()
            self.lines.append(l)
    def label(self, name):
        self.lines.append(name + ":")
    def uid(self, prefix="L"):
        self._uid += 1
        return f"{prefix}_{self._uid}"
    def c(self, s):
        self.lines.append("    ; " + s)
    def text(self):
        return "\n".join(self.lines) + "\n"

def vr(a, n=1):
    return f"v{a}" if n == 1 else f"v[{a}:{a+n-1}]"
def ar(a, n=1):
    return f"a{a}" if n == 1 else f"a[{a}:{a+n-1}]"
def sr(a, n=1):
    return f"s{a}" if n == 1 else f"s[{a}:{a+n-1}]"
def reg(x, n=1):
    if isinstance(x, tuple):
        return (vr if x[0] == 'v' else ar)(x[1], n)
    return vr(x, n)

HEADER = """.amdgcn_target "amdgcn-amd-amdhsa--gfx950"
.text
"""
def kernel_begin(name):
    return f""".globl {name}
.p2align 8
.type {name},@function
{name}:
"""
def kernel_desc(name, vgpr=256, accum=256, sgpr=102):
    return f""".section .rodata,"a"
.p2align 6
.amdhsa_kernel {name}
  .amdhsa_next_free_vgpr {vgpr}
  .amdhsa_next_free_sgpr {sgpr}
  .amdhsa_accum_offset {accum}
  .amdhsa_group_segment_fixed_size 0
  .amdhsa_kernarg_size 128
  .amdhsa_user_sgpr_count 2
  .amdhsa_user_sgpr_kernarg_segment_ptr 1
  .amdhsa_system_sgpr_workgroup_id_x 1
  .amdhsa_float_denorm_mode_32 3
.end_amdhsa_kernel
.text
"""
```

```python
NEAR = 0x0
MISC = 0x200000
QX = 0x400000
KX = 0x1C00000
VX = 0x3400000
UX = 0x4C00000
PX = 0x9C00000
BASE = 0xA100000
WS_USED = 0xA400000
CH = 12288
PROG_Q = MISC + 0x0000
PROG_K = MISC + 0x0100
PROG_V = MISC + 0x0200
PROG_U = MISC + 0x0300
G_OFF = MISC + 0x1000
R_OFF = MISC + 0x4000
H_OFF = MISC + 0x8000
NSEG = 64
KM = 1; KP = 1
MEM_RING = 3
MEM_L = 0
P_L = 0x24000
UM_L = 0x48000
def physc(o):
    assert o % 8192 == 0
    return o * 2
MEM_CS = physc(16384); P_CS = physc(24576)
DBG_TICK_F = 0; DBG_TICK_B = 4; DBG_READY = 8; DBG_PAR = 12; DBG_X1 = 16; DBG_X2 = 20; DBG_X3 = 24; DBG_READYB = 28
NQ, NV, NR, NX = 32, 32, 40, 24
NCHAIN = NQ + NV + NR
PXH = 2560
```

```python
from asmlib import *
from layout import *

S_WS = 4
S_DBG = 8
S_W = 12
S_ROLE = 13
S_ID = 14
S_FAIL = 15
S_A0 = 16
S_B0 = 20
S_C0 = 24
S_D0 = 28
T0, T1, T2, T3 = 32, 33, 34, 35
S_SEG = 36
S_OFF = 37
S_PROG = 38
S_SPIN = 39
S_X = 40
SPIN_MAX = 100000

STAMPS = False
MERGED = False
NREADY = 104
OPT = set()
STAMP_OFF = MISC + 0x20000
def stamp(a, i):
    if not STAMPS: return
    sk = a.uid("st")
    a(f"""
s_cmp_lg_u32 s{S_W}, 0
s_cbranch_scc1 {sk}
s_memrealtime s[62:63]
s_memtime s[64:65]
s_lshl_b32 s61, s3, 6
s_add_u32 s61, s61, {STAMP_OFF + 4*i}
v_mov_b32 v3, s61
s_waitcnt lgkmcnt(0)
v_mov_b32 v2, s62
s_mov_b64 exec, 1
buffer_store_dword v2, v3, s[{S_WS}:{S_WS+3}], 0 offen
v_mov_b32 v2, s64
buffer_store_dword v2, v3, s[{S_WS}:{S_WS+3}], 0 offen offset:32
s_mov_b64 exec, -1
s_waitcnt vmcnt(0)
{sk}:
""")

def srd(a, s, karg_off, nbytes, add=None):
    a(f"s_load_dwordx2 s[{s}:{s+1}], s[0:1], {karg_off}")
    a(f"s_mov_b32 s{s+2}, {nbytes}")
    a(f"s_mov_b32 s{s+3}, 0x20000")

def poll_progress(a, voff, need_sreg, lbl):
    ok = a.uid("pp_ok"); lp = a.uid("pp")
    a(f"""
s_cmp_ge_u32 s{S_PROG}, s{need_sreg}
s_cbranch_scc1 {ok}
s_mov_b32 s{S_SPIN}, 0
{lp}:
buffer_load_dword v2, v{voff}, s[{S_WS}:{S_WS+3}], 0 offen sc1
s_waitcnt vmcnt(0)
v_readfirstlane_b32 s{S_PROG}, v2
s_cmp_ge_u32 s{S_PROG}, s{need_sreg}
s_cbranch_scc1 {ok}
s_sleep 4
s_add_u32 s{S_SPIN}, s{S_SPIN}, 1
s_cmp_lt_u32 s{S_SPIN}, {SPIN_MAX}
s_cbranch_scc1 {lp}
s_branch {lbl}
{ok}:
""")

def bulk_ready(a, prog_base_sreg_expr):
    if not MERGED: return
    sk = a.uid("br")
    a(f"""
s_cmp_lg_u32 s{S_W}, 0
s_cbranch_scc1 {sk}
v_mov_b32 v3, s{T0}
v_mov_b32 v2, 0
s_mov_b64 exec, 1
buffer_store_dword v2, v3, s[{S_WS}:{S_WS+3}], 0 offen sc1
s_waitcnt vmcnt(0)
v_mov_b32 v3, {DBG_READYB}
v_mov_b32 v2, 1
buffer_atomic_add v2, v3, s[{S_DBG}:{S_DBG+3}], 0 offen sc1
s_waitcnt vmcnt(0)
s_mov_b64 exec, -1
{sk}:
""")

def w192_stage_setup(a, vo, vt):
    for q in range(3):
        a(f"v_add_u32 v{vt}, {64*q}, v1")
        a(f"v_mul_u32_u24 v{vt+1}, 2731, v{vt}")
        a(f"v_lshrrev_b32 v{vt+1}, 16, v{vt+1}")
        a(f"v_mul_u32_u24 v{vt+2}, 24, v{vt+1}")
        a(f"v_sub_u32 v{vt}, v{vt}, v{vt+2}")
        a(f"v_lshlrev_b32 v{vt}, 4, v{vt}")
        a(f"v_mul_u32_u24 v{vt+1}, 12288, v{vt+1}")
        a(f"v_add_u32 v{vo+q}, v{vt}, v{vt+1}")

def w192_issue(a, vo, srd_s, s_goff, lds_base):
    raise NotImplementedError

def role_proj(a, standalone_flags=True):
    S_TY, S_GO, S_LW, S_OUT, S_XO, S_BUF, S_PF, S_M0 = range(S_X, S_X + 8)
    V_WO = 4
    V_TR = 7
    V_XO = 80
    V_XR = 90
    V_XB = 94
    V_O4 = 10; V_O2 = 11; V_FL = 12
    V_ACC = 16
    V_B = 100
    NST = 4
    V_P = 56
    a.c("==== proj role")
    stamp(a, 0)
    a(f"""
s_lshl_b32 s{T0}, s{S_TY}, 8
s_lshl_b32 s{T1}, s{S_ID}, 2
s_add_u32 s{T0}, s{T0}, s{T1}
s_add_u32 s{T0}, s{T0}, {PROG_Q}
""")
    bulk_ready(a, None)
    a(f"s_load_dwordx2 s[{S_A0}:{S_A0+1}], s[0:1], 16")
    a(f"s_load_dwordx2 s[{S_C0}:{S_C0+1}], s[0:1], 24")
    a(f"s_load_dwordx2 s[{S_D0}:{S_D0+1}], s[0:1], 32")
    srd(a, S_B0, 0, 2621440)
    a(f"""
s_mov_b32 s{S_A0+2}, 7864320
s_mov_b32 s{S_A0+3}, 0x20000
s_waitcnt lgkmcnt(0)
s_cmp_eq_u32 s{S_TY}, 1
s_cselect_b64 s[{S_A0}:{S_A0+1}], s[{S_C0}:{S_C0+1}], s[{S_A0}:{S_A0+1}]
s_cmp_eq_u32 s{S_TY}, 2
s_cselect_b64 s[{S_A0}:{S_A0+1}], s[{S_D0}:{S_D0+1}], s[{S_A0}:{S_A0+1}]
""")
    w192_stage_setup(a, V_WO, 16)
    a(f"""
s_mul_i32 s{S_GO}, s{S_ID}, 384
s_mul_i32 s{T0}, s{S_W}, {16*12288}
s_add_u32 s{S_GO}, s{S_GO}, s{T0}
s_mul_i32 s{S_LW}, s{S_W}, 6144
""")
    def w_issue(chunk, slot):
        for q in range(6):
            a(f"s_add_u32 m0, s{S_LW}, {slot*24576 + q*1024}")
            a(f"s_add_u32 s{S_OFF}, s{S_GO}, {chunk*64*12288 + (q//3)*8*12288}")
            a(f"buffer_load_dwordx4 v{V_WO + q%3}, s[{S_A0}:{S_A0+3}], s{S_OFF} offen lds")
    for i in range(10):
        a(f"""
v_add_u32 v16, {64*i}, v1
v_mul_u32_u24 v17, 3277, v16
v_lshrrev_b32 v17, 18, v17
v_mul_u32_u24 v18, 80, v17
v_sub_u32 v16, v16, v18                ; p
s_lshl_b32 s{T0}, s{S_W}, 3
v_add_u32 v17, s{T0}, v17              ; row 0..31
v_and_b32 v18, 15, v17
v_xor_b32 v16, v16, v18
v_lshlrev_b32 v16, 4, v16
v_lshrrev_b32 v19, 2, v18
v_lshlrev_b32 v19, 3, v19
v_and_b32 v20, 3, v18
v_add_u32 v19, v19, v20
v_lshrrev_b32 v20, 4, v17
v_lshlrev_b32 v20, 2, v20
v_add_u32 v19, v19, v20
s_cmp_eq_u32 s{S_TY}, 2
s_cselect_b64 vcc, -1, 0
v_cndmask_b32 v17, v17, v19, vcc
v_mul_u32_u24 v17, 1280, v17
v_add_u32 v{V_XO+i}, v16, v17
""")
    a(f"""
v_and_b32 v16, 15, v1
v_lshrrev_b32 v17, 4, v1
v_and_b32 v18, 3, v16
v_xor_b32 v17, v17, v18
v_and_b32 v18, 12, v16
v_mul_u32_u24 v16, 1280, v16
""")
    for v in range(4):
        a(f"v_xor_b32 v19, {4*v}, v18")
        a(f"v_add_u32 v19, v19, v17")
        a(f"v_lshlrev_b32 v19, 4, v19")
        a(f"v_add_u32 v{V_XR+v}, v19, v16")
    XBUF = [122880, 0, 40960]
    def x_setup(seg_sreg, buf_sreg):
        a(f"s_mul_i32 s{S_XO}, s{seg_sreg}, 40960")
        a(f"s_mul_i32 s{T0}, s{S_W}, 10240")
        a(f"s_add_u32 s{S_M0}, s{T0}, s{buf_sreg}")
    def x_dma(i):
        a(f"s_add_u32 m0, s{S_M0}, {1024*i}")
        a("s_nop 0")
        a(f"buffer_load_dwordx4 v{V_XO+i}, s[{S_B0}:{S_B0+3}], s{S_XO} offen lds")
    def x_issue(seg_sreg, buf_sreg):
        x_setup(seg_sreg, buf_sreg)
        for i in range(10):
            x_dma(i)
    for c in range(5):
        w_issue(c, c)
    a(f"s_mov_b32 s{S_SEG}, 0")
    a(f"s_mov_b32 s{S_BUF}, {XBUF[0]}")
    x_issue(S_SEG, S_BUF)
    a(f"""
v_lshrrev_b32 v16, 4, v1
v_lshlrev_b32 v16, 3, v16
v_bfe_u32 v17, v1, 2, 2
v_add_u32 v16, v16, v17
v_mul_u32_u24 v16, 384, v16
v_and_b32 v17, 3, v1
v_lshlrev_b32 v17, 3, v17
s_mul_i32 s{T0}, s{S_W}, 96
v_add3_u32 v{V_TR}, v16, v17, s{T0}
""")
    def wfrag(t, kk):
        return (t * 20 + kk) * 4
    order = [("w", c) for c in range(5)] + [("x", 0)]
    def younger(item):
        i = order.index(item)
        return sum(6 if k == "w" else 10 for k, _ in order[i + 1:])
    for c in range(10):
        slot = c % 5
        a(f"s_waitcnt vmcnt({younger(('w', c))})")
        a("s_barrier")
        a(f"v_add_u32 v16, {slot*24576}, v{V_TR}")
        for t in range(3):
            for kl in range(2):
                for h in range(2):
                    r = wfrag(t, 2 * c + kl) + 2 * h
                    a(f"ds_read_b64_tr_b16 a[{r}:{r+1}], v16 offset:{t*32 + (kl*32 + 4*h)*384}")
        a("s_waitcnt lgkmcnt(0)")
        if c + 5 < 10:
            a("s_barrier")
            w_issue(c + 5, slot)
            order.append(("w", c + 5))
    a("s_barrier")
    stamp(a, 1)
    a(f"s_mov_b32 s{T2}, 1")
    a(f"s_mov_b32 s{T3}, {XBUF[1]}")
    x_issue(T2, T3)
    a(f"""
s_mul_i32 s{S_OUT}, s{S_TY}, {KX-QX}
s_add_u32 s{S_OUT}, s{S_OUT}, {QX}
s_mul_i32 s{T0}, s{S_ID}, {CH}
s_add_u32 s{S_OUT}, s{S_OUT}, s{T0}
s_mul_i32 s{T0}, s{S_W}, 1536
v_lshlrev_b32 v{V_O4}, 4, v1
v_add_u32 v{V_O4}, s{T0}, v{V_O4}
v_lshlrev_b32 v{V_O2}, 3, v1
v_add_u32 v{V_O2}, s{T0}, v{V_O2}
v_add_u32 v{V_O2}, 1024, v{V_O2}
s_lshl_b32 s{T0}, s{S_TY}, 8
s_lshl_b32 s{T1}, s{S_ID}, 2
s_add_u32 s{T0}, s{T0}, s{T1}
s_add_u32 s{T0}, s{T0}, {PROG_Q}
v_mov_b32 v{V_FL}, s{T0}
s_mov_b32 s{S_PF}, {XBUF[2]}
""")
    lp = a.uid("proj_loop"); end = a.uid("proj_end")
    a.label(lp)
    a("s_barrier")
    for v in range(4):
        a(f"v_add_u32 v{V_XB+v}, s{S_BUF}, v{V_XR+v}")
    def rd(kk):
        st = kk % NST
        for tt in range(2):
            r = V_B + st * 8 + tt * 4
            a(f"ds_read_b128 v[{r}:{r+3}], v{V_XB + (kk&3)} offset:{tt*20480 + (kk>>2)*256}")
    for kk in range(NST - 1):
        rd(kk)
    a(f"s_add_u32 s{T2}, s{S_SEG}, 2")
    a(f"s_min_u32 s{T2}, s{T2}, {NSEG-1}")
    x_setup(T2, S_PF)
    for kk in range(20):
        st = kk % NST
        if kk + NST - 1 < 20:
            rd(kk + NST - 1)
        a(f"s_waitcnt lgkmcnt({2 * min(NST - 1, 19 - kk)})")
        for t in range(3):
            for tt in range(2):
                acc = V_ACC + (t * 2 + tt) * 4
                wf = wfrag(t, kk)
                b = V_B + st * 8 + tt * 4
                c = "0" if kk == 0 else f"v[{acc}:{acc+3}]"
                a(f"v_mfma_f32_16x16x32_bf16 v[{acc}:{acc+3}], a[{wf}:{wf+3}], v[{b}:{b+3}], {c}")
            if t == 1 and kk < 10 and "nodma" not in OPT:
                x_dma(kk)
        if kk == 12:
            sk = a.uid("nofl")
            if "nomid" not in OPT:
                a("s_waitcnt vmcnt(10)")
            a("s_barrier")
            a(f"""
s_cmp_lg_u32 s{S_W}, 0
s_cbranch_scc1 {sk}
v_mov_b32 v2, s{S_SEG}
s_mov_b64 exec, 1
buffer_store_dword v2, v{V_FL}, s[{S_WS}:{S_WS+3}], 0 offen sc1
s_mov_b64 exec, -1
{sk}:
""")
    a("s_nop 7")
    for tt in range(2):
        for t in range(3):
            acc = V_ACC + (t * 2 + tt) * 4
            p = V_P + tt * 6 + t * 2
            a(f"v_cvt_pk_bf16_f32 v{p}, v{acc}, v{acc+1}")
            a(f"v_cvt_pk_bf16_f32 v{p+1}, v{acc+2}, v{acc+3}")
    a(f"s_mul_i32 s{S_OFF}, s{S_SEG}, {32*CH}")
    a(f"s_add_u32 s{S_OFF}, s{S_OFF}, s{S_OUT}")
    a(f"s_add_u32 s{T0}, s{S_OFF}, 6144")
    for tt in range(2):
        p = V_P + tt * 6
        so = S_OFF if tt == 0 else T0
        sc = "" if "nosc1" in OPT else "sc1"
        if "nostore" in OPT: continue
        a(f"buffer_store_dwordx4 v[{p}:{p+3}], v{V_O4}, s[{S_WS}:{S_WS+3}], s{so} offen {sc}")
        a(f"buffer_store_dwordx2 v[{p+4}:{p+5}], v{V_O2}, s[{S_WS}:{S_WS+3}], s{so} offen {sc}")
    a(f"""
s_mov_b32 s{T0}, s{S_BUF}
s_add_u32 s{S_BUF}, s{S_BUF}, 40960
s_cmp_eq_u32 s{S_BUF}, {122880+40960}
s_cselect_b32 s{S_BUF}, 0, s{S_BUF}
s_cmp_eq_u32 s{S_BUF}, 81920
s_cselect_b32 s{S_BUF}, 122880, s{S_BUF}
s_mov_b32 s{S_PF}, s{T0}
s_add_u32 s{S_SEG}, s{S_SEG}, 1
s_cmp_lt_u32 s{S_SEG}, {NSEG}
s_cbranch_scc1 {lp}
s_waitcnt vmcnt(0)
s_barrier
""")
    stamp(a, 2)
    a(f"""
s_cmp_lg_u32 s{S_W}, 0
s_cbranch_scc1 {end}
v_mov_b32 v2, s{S_SEG}
s_mov_b64 exec, 1
buffer_store_dword v2, v{V_FL}, s[{S_WS}:{S_WS+3}], 0 offen sc1
{end}:
s_endpgm
""")


KS_TILES = [(0, 1), (3, 4), (6, 7), (9, 10), (2, 5), (8, 11)]

def role_bu(a, fail_lbl):
    S_GO, S_LW, S_OUT, S_VO, S_BUF, S_NEED = range(S_X, S_X + 6)
    V_L16 = 4; V_TR = 5; V_L8 = 6; V_FL = 7; V_PV = 8; V_AB = 9; V_AB8 = 10
    V_A = 16
    V_ACC = 64
    V_P = 80
    a.c("==== BU role")
    stamp(a, 0)
    a(f"s_lshl_b32 s{T0}, s{S_ID}, 2")
    a(f"s_add_u32 s{T0}, s{T0}, {PROG_U}")
    bulk_ready(a, None)
    srd(a, S_A0, 40, 7864320)
    a(f"""
v_lshlrev_b32 v{V_L16}, 4, v1
v_lshlrev_b32 v{V_L8}, 3, v1
s_mul_i32 s{S_GO}, s{S_ID}, 245760
s_mul_i32 s{S_LW}, s{S_W}, 5120
s_add_u32 s{S_GO}, s{S_GO}, s{S_LW}
s_mov_b32 s{S_PROG}, 0
s_waitcnt lgkmcnt(0)
""")
    def w_issue(T, slot):
        a(f"s_add_u32 m0, s{S_LW}, {slot*20480}")
        a(f"s_add_u32 s{S_OFF}, s{S_GO}, {T*20480}")
        for q in range(4):
            a(f"buffer_load_dwordx4 v{V_L16}, s[{S_A0}:{S_A0+3}], s{S_OFF} offen offset:{q*1024} lds")
        a(f"s_add_u32 m0, m0, 4096")
        a(f"s_add_u32 s{S_OFF}, s{S_OFF}, 4096")
        a(f"buffer_load_dwordx4 v{V_L16}, s[{S_A0}:{S_A0+3}], s{S_OFF} offen lds")
    NS = 7
    for T in range(NS):
        w_issue(T, T)
    a(f"""
v_lshrrev_b32 v16, 2, v1
v_mul_u32_u24 v16, 1280, v16
v_and_b32 v17, 3, v1
v_lshlrev_b32 v17, 3, v17
s_mul_i32 s{T0}, s{S_W}, 320
v_add3_u32 v{V_TR}, v16, v17, s{T0}
""")
    def wfrag(ct, ks):
        return (ct * 6 + ks) * 4
    issued = NS
    for T in range(12):
        slot = T % NS
        a(f"s_waitcnt vmcnt({(issued - 1 - T) * 5})")
        a("s_barrier")
        a(f"v_add_u32 v16, {slot*20480}, v{V_TR}")
        ks = [i for i, p in enumerate(KS_TILES) if T in p][0]
        h = KS_TILES[ks].index(T)
        for ct in range(10):
            r = wfrag(ct, ks) + 2 * h
            a(f"ds_read_b64_tr_b16 a[{r}:{r+1}], v16 offset:{ct*32}")
        a("s_waitcnt lgkmcnt(0)")
        if issued < 12:
            a("s_barrier")
            w_issue(issued, slot)
            issued += 1
    a("s_barrier")
    stamp(a, 1)
    a(f"""
s_lshl_b32 s{T1}, s{S_ID}, 2
s_add_u32 s{T0}, s{T1}, {PROG_V}
v_mov_b32 v{V_PV}, s{T0}
s_add_u32 s{T0}, s{T1}, {PROG_U}
v_mov_b32 v{V_FL}, s{T0}
s_mul_i32 s{S_VO}, s{S_ID}, {CH}
s_add_u32 s{S_VO}, s{S_VO}, {VX}
s_mul_i32 s{S_LW}, s{S_W}, 3072
s_add_u32 s{S_VO}, s{S_VO}, s{S_LW}
s_lshl_b32 s{S_OUT}, s{S_ID}, 10
s_mul_i32 s{T0}, s{S_W}, {10*32768}
s_add_u32 s{S_OUT}, s{S_OUT}, s{T0}
s_add_u32 s{S_OUT}, s{S_OUT}, {UX}
s_mov_b32 s{S_SEG}, 0
s_mov_b32 s{S_BUF}, 0
s_mov_b32 s{S_NEED}, 1
""")
    def v_issue(seg_minus_need, buf_expr):
        a(f"s_sub_u32 s{T0}, s{S_NEED}, 1")
        a(f"s_mul_i32 s{S_OFF}, s{T0}, {32*CH}")
        a(f"s_add_u32 s{S_OFF}, s{S_OFF}, s{S_VO}")
        a(f"s_add_u32 m0, s{S_LW}, {buf_expr}")
        a("s_nop 0")
        for q in range(3):
            a(f"buffer_load_dwordx4 v{V_L16}, s[{S_WS}:{S_WS+3}], s{S_OFF} offen offset:{q*1024} sc1 lds")
    if MERGED:
        import roles_chain
        roles_chain.dbg_wait(a, DBG_READYB, 128, fail_lbl)
    poll_progress(a, V_PV, S_NEED, fail_lbl)
    v_issue(0, f"s{S_BUF}")
    a("s_waitcnt vmcnt(0)")
    lp = a.uid("bu_loop"); end = a.uid("bu_end")
    a.label(lp)
    a("s_waitcnt vmcnt(5)")
    a("s_barrier")
    a(f"v_add_u32 v{V_AB}, s{S_BUF}, v{V_L16}")
    a(f"v_add_u32 v{V_AB8}, s{S_BUF}, v{V_L8}")
    def afr(tt, ks):
        return V_A + (tt * 6 + ks) * 4
    for ks in range(6):
        for tt in range(2):
            r = afr(tt, ks)
            if ks < 4:
                a(f"ds_read_b128 v[{r}:{r+3}], v{V_AB} offset:{tt*6144 + ks*1536}")
            else:
                for h in range(2):
                    a(f"ds_read_b64 v[{r+2*h}:{r+2*h+1}], v{V_AB8} offset:{tt*6144 + ((ks-4)*2+h)*1536 + 1024}")
    a(f"s_mul_i32 s{S_OFF}, s{S_SEG}, {40*32768}")
    a(f"s_add_u32 s{T3}, s{S_OFF}, s{S_OUT}")
    def epi(ct):
        acc = V_ACC + (ct & 1) * 8
        p = V_P + (ct & 1) * 4
        a(f"v_cvt_pk_bf16_f32 v{p}, v{acc}, v{acc+1}")
        a(f"v_cvt_pk_bf16_f32 v{p+1}, v{acc+4}, v{acc+5}")
        a(f"v_cvt_pk_bf16_f32 v{p+2}, v{acc+2}, v{acc+3}")
        a(f"v_cvt_pk_bf16_f32 v{p+3}, v{acc+6}, v{acc+7}")
        a(f"buffer_store_dwordx4 v[{p}:{p+3}], v{V_L16}, s[{S_WS}:{S_WS+3}], s{T3} offen sc1")
        a(f"s_add_u32 s{T3}, s{T3}, 32768")
    for ct in range(10):
        for ks in range(6):
            if ct == 0:
                left = {0: 14, 1: 12, 2: 10, 3: 8, 4: 4, 5: 0}[ks]
                a(f"s_waitcnt lgkmcnt({left})")
            for tt in range(2):
                acc = V_ACC + (ct & 1) * 8 + tt * 4
                c = "0" if ks == 0 else f"v[{acc}:{acc+3}]"
                r = afr(tt, ks); wf = wfrag(ct, ks)
                a(f"v_mfma_f32_16x16x32_bf16 v[{acc}:{acc+3}], v[{r}:{r+3}], a[{wf}:{wf+3}], {c}")
            if ks == 4 and ct > 0:
                epi(ct - 1)
        if ct == 5:
            sk = a.uid("nofl"); sk2 = a.uid("nov")
            a("s_waitcnt vmcnt(5)")
            a("s_barrier")
            a(f"""
s_cmp_lg_u32 s{S_W}, 0
s_cbranch_scc1 {sk}
v_mov_b32 v2, s{S_SEG}
s_mov_b64 exec, 1
buffer_store_dword v2, v{V_FL}, s[{S_WS}:{S_WS+3}], 0 offen sc1
s_mov_b64 exec, -1
{sk}:
s_add_u32 s{S_NEED}, s{S_SEG}, 2
s_min_u32 s{S_NEED}, s{S_NEED}, {NSEG}
s_xor_b32 s{S_BUF}, s{S_BUF}, 12288
""")
            poll_progress(a, V_PV, S_NEED, fail_lbl)
            v_issue(0, f"s{S_BUF}")
    a("s_nop 7")
    epi(9)
    a(f"""
s_add_u32 s{S_SEG}, s{S_SEG}, 1
s_cmp_lt_u32 s{S_SEG}, {NSEG}
s_cbranch_scc1 {lp}
s_waitcnt vmcnt(0)
s_barrier
""")
    stamp(a, 2)
    a(f"""
s_cmp_lg_u32 s{S_W}, 0
s_cbranch_scc1 {end}
v_mov_b32 v2, s{S_SEG}
s_mov_b64 exec, 1
buffer_store_dword v2, v{V_FL}, s[{S_WS}:{S_WS+3}], 0 offen sc1
{end}:
s_endpgm
""")
```

```python
from asmlib import *
from layout import *
from roles_bulk import *
import roles_bulk
import math

WS = f"s[{S_WS}:{S_WS+3}]"
DBG = f"s[{S_DBG}:{S_DBG+3}]"
CL = 192 ** -0.5 * math.log2(math.e)
import struct
def f32hex(x): return "0x%08x" % struct.unpack("<I", struct.pack("<f", x))[0]

class Lgkm:
    def __init__(self, a): self.a = a; self.q = []
    def op(self, text, tag): self.a(text); self.q.append(tag)
    def wait(self, tag):
        idx = max(i for i, t in enumerate(self.q) if t == tag) if tag in self.q else None
        if idx is None: return
        n = len(self.q) - 1 - idx
        assert n <= 15
        self.a(f"s_waitcnt lgkmcnt({n})")
        self.q = self.q[idx + 1:]
    def drain(self): self.a("s_waitcnt lgkmcnt(0)"); self.q = []

def dbg_wait(a, off, need, fail, sres=T0):
    lp = a.uid("dw"); ok = a.uid("dwo")
    a(f"""
v_mov_b32 v3, {off}
s_mov_b32 s{S_SPIN}, 0
{lp}:
buffer_load_dword v2, v3, {DBG}, 0 offen sc1
s_waitcnt vmcnt(0)
v_readfirstlane_b32 s{sres}, v2
s_cmp_ge_u32 s{sres}, {need}
s_cbranch_scc1 {ok}
s_sleep 8
s_add_u32 s{S_SPIN}, s{S_SPIN}, 1
s_cmp_lt_u32 s{S_SPIN}, {SPIN_MAX}
s_cbranch_scc1 {lp}
s_branch {fail}
{ok}:
""")

def dbg_signal(a, off):
    sk = a.uid("ds")
    a(f"""
s_waitcnt vmcnt(0)
s_barrier
s_cmp_lg_u32 s{S_W}, 0
s_cbranch_scc1 {sk}
v_mov_b32 v3, {off}
v_mov_b32 v2, 1
s_mov_b64 exec, 1
buffer_atomic_add v2, v3, {DBG}, 0 offen sc1
s_mov_b64 exec, -1
{sk}:
""")

def phys(a, vdst, vsrc, vtmp, s_par):
    a(f"""
v_lshrrev_b32 v{vtmp}, 13, v{vsrc}
v_lshlrev_b32 v{vtmp}, 14, v{vtmp}
v_and_b32 v{vdst}, 0x1fff, v{vsrc}
v_or3_b32 v{vdst}, v{vdst}, v{vtmp}, s{s_par}
""")

def get_par(a, s_par, fail):
    dbg_wait(a, DBG_PAR, 1, fail, s_par)
    a(f"s_sub_u32 s{s_par}, s{s_par}, 1")
    a(f"s_lshl_b32 s{s_par}, s{s_par}, 13")

def check(a, regs, vt):
    a(f"v_max3_u32 v{vt}, v{regs[0]}, v{regs[1]}, v{regs[2]}")
    rest = regs[3:]
    while len(rest) >= 2:
        a(f"v_max3_u32 v{vt}, v{vt}, v{rest[0]}, v{rest[1]}"); rest = rest[2:]
    if rest:
        a(f"v_max_u32 v{vt}, v{vt}, v{rest[0]}")
    a(f"v_cmp_eq_u32 vcc, -1, v{vt}")

def gather_poll(a, loads, s_base, vt, fail):
    lp = a.uid("gp"); ok = a.uid("gpo")
    regs = [r for (_, nd, d) in loads for r in range(d, d + nd)]
    a(f"s_mov_b32 s{S_SPIN}, 0")
    a.label(lp)
    for (vo, nd, d) in loads:
        a(f"buffer_load_dwordx{nd} {vr(d, nd)}, v{vo}, {WS}, s{s_base} offen sc1")
    a("s_waitcnt vmcnt(0)")
    check(a, regs, vt)
    a(f"""
s_cbranch_vccz {ok}
s_add_u32 s{S_SPIN}, s{S_SPIN}, 1
s_cmp_lt_u32 s{S_SPIN}, {SPIN_MAX}
s_cbranch_scc1 {lp}
s_branch {fail}
{ok}:
""")

def ring3_inc(a, s):
    a(f"s_add_u32 s{s}, s{s}, 1")
    a(f"s_cmp_eq_u32 s{s}, 3")
    a(f"s_cselect_b32 s{s}, 0, s{s}")

def mem_gather_setup(a, V_MO, V_MW, s_par, lds_off):
    a(f"""
s_mul_i32 s{T0}, s{S_W}, 2560
v_lshlrev_b32 v16, 4, v1
v_add_u32 v16, s{T0}, v16
v_add_u32 v17, 1024, v16
v_add_u32 v18, 2048, v16
v_cmp_gt_u32 vcc, 32, v1
s_nop 1
v_cndmask_b32 v18, v17, v18, vcc
v_add_u32 v{V_MW}, {lds_off}, v16
v_add_u32 v{V_MW+1}, {lds_off}, v18
""")
    phys(a, V_MO, 16, 19, s_par); phys(a, V_MO + 1, 17, 19, s_par); phys(a, V_MO + 2, 18, 19, s_par)

def load_w192(a, srd_s, s_go, s_lw, v_wo, v_tr, dst, nslots, pre_issued=None):
    pass

def softmax5(a, s, t0, t1, t2):
    a(f"""
v_max3_f32 v{t0}, v{s[0]}, v{s[1]}, v{s[2]}
v_max3_f32 v{t0}, v{t0}, v{s[3]}, v{s[4]}
s_nop 1
v_max_f32_dpp v{t0}, v{t0}, v{t0} quad_perm:[1,0,3,2] row_mask:0xf bank_mask:0xf
s_nop 1
v_max_f32_dpp v{t0}, v{t0}, v{t0} quad_perm:[2,3,0,1] row_mask:0xf bank_mask:0xf
s_nop 1
v_max_f32_dpp v{t0}, v{t0}, v{t0} row_half_mirror row_mask:0xf bank_mask:0xf
v_mul_f32 v{t0}, s{S_NCL}, v{t0}
""")
    for r in s:
        a(f"v_fma_f32 v{r}, v{r}, s{S_CL}, v{t0}")
    for r in s:
        a(f"v_exp_f32 v{r}, v{r}")
    a(f"""
v_add_f32 v{t0}, v{s[0]}, v{s[1]}
v_add_f32 v{t1}, v{s[2]}, v{s[3]}
v_add_f32 v{t0}, v{t0}, v{s[4]}
v_add_f32 v{t0}, v{t0}, v{t1}
s_nop 1
v_add_f32_dpp v{t0}, v{t0}, v{t0} quad_perm:[1,0,3,2] row_mask:0xf bank_mask:0xf
s_nop 1
v_add_f32_dpp v{t0}, v{t0}, v{t0} quad_perm:[2,3,0,1] row_mask:0xf bank_mask:0xf
s_nop 1
v_add_f32_dpp v{t0}, v{t0}, v{t0} row_half_mirror row_mask:0xf bank_mask:0xf
v_rcp_f32 v{t0}, v{t0}
s_nop 0
""")
    for r in s:
        a(f"v_mul_f32 v{r}, v{r}, v{t0}")

S_CL = 56; S_NCL = 57; S_PAR = 58; S_MS = 59; S_PS = 60

def dppmov(a, d, s, perm):
    a(f"v_mov_b32_dpp v{d}, v{s} {perm} row_mask:0xf bank_mask:0xf")

def wstage_192(a, srds, V_WO, V_TR, S_GO, S_LW, dest, nslot=6):
    chunks = [(mi, b) for mi in range(len(srds)) for b in range(10)]
    def issue(ci, slot):
        mi, b = chunks[ci]
        for q in range(6):
            a(f"s_add_u32 m0, s{S_LW}, {slot*24576 + q*1024}")
            a(f"s_add_u32 s{S_OFF}, s{S_GO}, {b*64*12288 + (q//3)*8*12288}")
            a(f"buffer_load_dwordx4 v{V_WO + q%3}, s[{srds[mi]}:{srds[mi]+3}], s{S_OFF} offen lds")
    n = len(chunks)
    issued = min(nslot, n)
    for c in range(issued):
        issue(c, c)
    for c in range(n):
        slot = c % nslot
        mi, b = chunks[c]
        a(f"s_waitcnt vmcnt({(issued - 1 - c) * 6})")
        a("s_barrier")
        a(f"v_add_u32 v3, {slot*24576}, v{V_TR}")
        for t in range(3):
            k, r0 = dest(mi, t, b)
            for h in range(4):
                r = r0 + 2 * h
                a(f"ds_read_b64_tr_b16 {k}[{r}:{r+1}], v3 offset:{t*32 + ((h>>1)*32 + 4*(h&1))*384}")
        a("s_waitcnt lgkmcnt(0)")
        if issued < n:
            a("s_barrier")
            issue(issued, slot)
            issued += 1
    a("s_barrier")

def tr192_base(a, V_TR):
    a(f"""
v_lshrrev_b32 v16, 4, v1
v_lshlrev_b32 v16, 3, v16
v_bfe_u32 v17, v1, 2, 2
v_add_u32 v16, v16, v17
v_mul_u32_u24 v16, 384, v16
v_and_b32 v17, 3, v1
v_lshlrev_b32 v17, 3, v17
s_mul_i32 s{T0}, s{S_W}, 96
v_add3_u32 v{V_TR}, v16, v17, s{T0}
""")

def idx_setup(a, V_IDX):
    a(f"""
v_and_b32 v16, 8, v1
v_mov_b32 v17, 0x4444
v_mov_b32 v18, 0xeeee
v_cmp_eq_u32 vcc, 0, v16
s_nop 1
v_cndmask_b32 v{V_IDX}, v18, v17, vcc
""")

def role_cq(a, fail):
    S_GO, S_LW, S_KO, S_PROG2, S_NEED = range(S_X, S_X + 5)
    L_W = 0; L_MEM = 98304; L_FT = 108544; L_SP = 114688; L_XP = 126976
    V_MO = 4; V_MW = 7; V_L16 = 9; V_IDX = 10; V_FTW = 11; V_FTR = 12; V_PX = 13; V_PM = 14; V_T = 15
    V_A = 16; V_ACC = 56; V_ST = 80; V_KX = 96; V_QX = 108
    V_SR = 120; V_SR1 = 121; V_K4 = 122; V_K2 = 123; V_XX = 124; V_XM = 125; V_PO = 126; V_FL = 127
    a.c("==== CQ role")
    stamp(a, 0)
    srd(a, S_A0, 16, 7864320); srd(a, S_B0, 24, 7864320)
    w192_stage_setup(a, 4, 16)
    tr192_base(a, 7)
    a(f"""
s_mul_i32 s{S_GO}, s{S_ID}, 384
s_mul_i32 s{T0}, s{S_W}, {16*12288}
s_add_u32 s{S_GO}, s{S_GO}, s{T0}
s_mul_i32 s{S_LW}, s{S_W}, 6144
s_waitcnt lgkmcnt(0)
""")
    LB = (3, 7)
    regfr = [(mi, t, b) for t in range(3) for b in range(10) if b not in LB for mi in range(2)]
    ldsfr = [(mi, t, b) for t in range(3) for b in LB for mi in range(2)]
    def wreg(mi, t, b):
        i = regfr.index((mi, t, b))
        return ('a', i * 8) if i < 32 else ('v', 128 + (i - 32) * 8)
    def dest(mi, t, b):
        if b in LB:
            return ('v', 16 + ldsfr.index((mi, t, b)) * 8)
        return wreg(mi, t, b)
    wstage_192(a, [S_A0, S_B0], 4, 7, S_GO, S_LW, dest)
    a(f"v_lshlrev_b32 v{V_L16}, 4, v1")
    a(f"s_mul_i32 s{T0}, s{S_W}, 24576")
    a(f"v_add_u32 v{V_SR}, s{T0}, v{V_L16}")
    a(f"v_add_u32 v{V_SR1}, 0x10000, v{V_L16}")
    for i in range(12):
        a(f"ds_write_b128 v{V_SR}, v[{16+i*8}:{19+i*8}] offset:{i*2048}")
        a(f"ds_write_b128 v{V_SR}, v[{20+i*8}:{23+i*8}] offset:{i*2048+1024}")
        if i % 4 == 3: a("s_waitcnt lgkmcnt(0)")
    stamp(a, 1)
    get_par(a, S_PAR, fail)
    mem_gather_setup(a, V_MO, V_MW, S_PAR, L_MEM)
    idx_setup(a, V_IDX)
    a(f"""
s_mov_b32 s{S_CL}, {f32hex(CL)}
s_mov_b32 s{S_NCL}, {f32hex(-CL)}
s_mul_i32 s{T0}, s{S_W}, 1536
s_add_u32 s{T0}, s{T0}, {L_FT}
v_and_b32 v16, 15, v1
v_lshlrev_b32 v16, 5, v16
v_lshrrev_b32 v17, 4, v1
v_lshlrev_b32 v17, 3, v17
v_add3_u32 v{V_FTW}, v16, v17, s{T0}
v_lshlrev_b32 v16, 3, v1
v_add_u32 v{V_FTR}, s{T0}, v16
; lane = m*8 + c
v_lshrrev_b32 v16, 3, v1          ; m
v_and_b32 v17, 7, v1              ; c
v_lshrrev_b32 v18, 2, v17         ; c>>2
v_and_b32 v19, 3, v17             ; c&3
v_lshlrev_b32 v20, 10, v18
v_lshlrev_b32 v21, 8, v19
v_lshlrev_b32 v22, 4, v16
v_add3_u32 v{V_XX}, v20, v21, v22
v_add_u32 v{V_XX}, 1024, v{V_XX}
v_lshlrev_b32 v20, 8, v18
v_lshlrev_b32 v21, 2, v19
v_add3_u32 v{V_XM}, v20, v21, v22
v_add_u32 v{V_XM}, 512, v{V_XM}
s_mul_i32 s{T0}, s{S_ID}, 640
v_and_b32 v20, 1, v17
v_lshlrev_b32 v20, 7, v20
v_lshlrev_b32 v21, 8, v18
v_add3_u32 v20, v20, v21, v22
v_add_u32 v20, s{T0}, v20
v_lshlrev_b32 v21, 6, v18
v_lshlrev_b32 v23, 3, v16
v_add3_u32 v21, v21, v23, s{T0}
v_add_u32 v21, 512, v21
""")
    phys(a, V_PX, 20, 23, S_PAR); phys(a, V_PM, 21, 23, S_PAR)
    a(f"v_add_u32 v20, s{T0}, v{V_L16}")
    phys(a, V_PO, 20, 23, S_PAR)
    a(f"""
s_mul_i32 s{T0}, s{S_W}, 1536
v_add_u32 v{V_K4}, s{T0}, v{V_L16}
v_lshlrev_b32 v{V_K2}, 3, v1
v_add_u32 v{V_K2}, s{T0}, v{V_K2}
v_add_u32 v{V_K2}, 1024, v{V_K2}
s_mul_i32 s{S_KO}, s{S_ID}, {CH}
s_lshl_b32 s{T0}, s{S_ID}, 2
s_add_u32 s{T0}, s{T0}, {PROG_Q}
v_mov_b32 v{V_FL}, s{T0}
""")
    def poison(slot_sreg, r):
        sk = a.uid("np")
        a(f"s_cmp_ge_u32 s{S_W}, {KP}")
        a(f"s_cbranch_scc1 {sk}")
        a(f"s_mul_i32 s{S_OFF}, s{slot_sreg}, {KP*P_CS}")
        a(f"s_mul_i32 s{T0}, s{S_W}, {P_CS}")
        a(f"s_add_u32 s{S_OFF}, s{S_OFF}, s{T0}")
        a(f"s_add_u32 s{S_OFF}, s{S_OFF}, {physc(P_L)}")
        a("s_mov_b32 exec_hi, 0xff")
        a(f"buffer_store_dwordx4 v[{r}:{r+3}], v{V_PO}, {WS}, s{S_OFF} offen sc1")
        a("s_mov_b32 exec_hi, -1")
        a.label(sk)
    for i in range(4): a(f"v_mov_b32 v{V_ACC+i}, -1")
    for sl in range(2):
        a(f"s_mov_b32 s{S_PS}, {sl}")
        poison(S_PS, V_ACC)
    dbg_signal(a, DBG_READY)
    def kq_load():
        a(f"s_add_u32 s{S_NEED}, s{S_SEG}, 1")
        ok = a.uid("kq_ok"); lp = a.uid("kq")
        a(f"""
s_cmp_ge_u32 s{S_PROG}, s{S_NEED}
s_cbranch_scc1 {ok}
s_mov_b32 s{S_SPIN}, 0
{lp}:
buffer_load_dword v2, v{V_FL}, {WS}, 0 offen sc1
buffer_load_dword v3, v{V_FL}, {WS}, 0 offen offset:256 sc1
s_waitcnt vmcnt(0)
v_min_u32 v2, v2, v3
s_nop 0
v_readfirstlane_b32 s{S_PROG}, v2
s_cmp_ge_u32 s{S_PROG}, s{S_NEED}
s_cbranch_scc1 {ok}
s_sleep 2
s_add_u32 s{S_SPIN}, s{S_SPIN}, 1
s_cmp_lt_u32 s{S_SPIN}, {SPIN_MAX}
s_cbranch_scc1 {lp}
s_branch {fail}
{ok}:
s_mul_i32 s{S_OFF}, s{S_SEG}, {32*CH}
s_add_u32 s{S_OFF}, s{S_OFF}, s{S_KO}
""")
        for base, vb in ((KX, V_KX), (QX, V_QX)):
            for tt in range(2):
                a(f"s_add_u32 s{T0}, s{S_OFF}, {base + tt*6144}")
                a(f"buffer_load_dwordx4 v[{vb+tt*6}:{vb+tt*6+3}], v{V_K4}, {WS}, s{T0} offen sc1")
                a(f"buffer_load_dwordx2 v[{vb+tt*6+4}:{vb+tt*6+5}], v{V_K2}, {WS}, s{T0} offen sc1")
    def stage_read(lg, t, b, tag):
        for mi in range(2):
            i = ldsfr.index((mi, t, b))
            r = V_ST + mi * 8
            lg.op(f"ds_read_b128 v[{r}:{r+3}], v{V_SR} offset:{i*2048}", tag)
            lg.op(f"ds_read_b128 v[{r+4}:{r+7}], v{V_SR} offset:{i*2048+1024}", tag)
    a(f"s_mov_b32 s{S_SEG}, 0")
    a(f"s_mov_b32 s{S_PROG}, 0")
    a(f"s_mov_b32 s{S_MS}, 0")
    a(f"s_mov_b32 s{S_PS}, 0")
    if roles_bulk.MERGED: dbg_wait(a, DBG_READYB, 128, fail)
    kq_load()
    dbg_wait(a, DBG_READY, NCHAIN, fail)
    stamp(a, 2)
    lp = a.uid("cq_loop"); done = a.uid("cq_done")
    a.label(lp)
    lg = Lgkm(a)
    stage_read(lg, 0, 3, "st")
    for i in range(24): a(f"v_mov_b32 v{V_ACC+i}, 0")
    a(f"s_mul_i32 s{T2}, s{S_MS}, {KM*MEM_CS}")
    gather_poll(a, [(V_MO, 4, V_A), (V_MO + 1, 4, V_A + 4), (V_MO + 2, 4, V_A + 8)], T2, V_T, fail)
    lg.op(f"ds_write_b128 v{V_MW}, v[{V_A}:{V_A+3}]", "w")
    lg.op(f"ds_write_b128 v{V_MW}, v[{V_A+4}:{V_A+7}] offset:1024", "w")
    lg.op(f"ds_write_b128 v{V_MW+1}, v[{V_A+8}:{V_A+11}]", "w")
    lg.drain()
    a("s_barrier")
    for b in range(10):
        lg.op(f"ds_read_b128 v[{V_A+4*b}:{V_A+4*b+3}], v{V_SR1} offset:{L_MEM - 65536 + b*1024}", f"A{b}")
    def accq(t): return V_ACC + t * 8
    def acck(t): return V_ACC + t * 8 + 4
    S0, S1, S2 = accq(0), acck(0), acck(1)
    F01 = None
    V_F01 = accq(1)
    def post(t):
        q, k = accq(t), acck(t)
        ins = []
        for r in range(4): ins.append(f"v_permlane32_swap_b32 v{q+r}, v{k+r}")
        for r in range(4): ins.append(f"v_add_f32 v{q+r}, v{q+r}, v{k+r}")
        ins.append(f"v_cvt_pk_bf16_f32 v{q}, v{q}, v{q+1}")
        ins.append(f"v_cvt_pk_bf16_f32 v{q+1}, v{q+2}, v{q+3}")
        return ins
    first = True
    for t in range(3):
        pend = post(t - 1) if t > 0 else []
        for b in range(10):
            if t == 0: lg.wait(f"A{b}")
            if b in LB: lg.wait("st")
            for mi in range(2):
                acc = accq(t) if mi == 0 else acck(t)
                if b in LB: w = f"v[{V_ST+mi*8}:{V_ST+mi*8+7}]"
                else:
                    k, r = wreg(mi, t, b); w = f"{k}[{r}:{r+7}]"
                a(f"v_smfmac_f32_16x16x64_bf16 v[{acc}:{acc+3}], v[{V_A+4*b}:{V_A+4*b+3}], {w}, v{V_IDX}")
                if pend and b >= 4:
                    for _ in range(3):
                        if pend: a(pend.pop(0))
                    if not pend:
                        lg.op(f"ds_write_b64 v{V_FTW}, v[{accq(t-1)}:{accq(t-1)+1}] offset:{(t-1)*512}", f"fw{t-1}")
            if t == 0 and b == 1:
                sk = a.uid("nop")
                a(f"s_cmp_eq_u32 s{S_SEG}, 0")
                a(f"s_cbranch_scc1 {sk}")
                a(f"s_xor_b32 s{T2}, s{S_PS}, 1")
                for i in range(4): a(f"v_mov_b32 v{accq(2)+i}, -1")
                poison(T2, accq(2))
                a("s_nop 1")
                for i in range(4): a(f"v_mov_b32 v{accq(2)+i}, 0")
                a.label(sk)
            if b == 3: stage_read(lg, t, 7, "st")
            if b == 7 and t < 2: stage_read(lg, t + 1, 3, "st")
            if t == 2 and b == 6:
                lg.op(f"ds_read_b64_tr_b16 v[{V_F01}:{V_F01+1}], v{V_FTR}", "f01")
                lg.op(f"ds_read_b64_tr_b16 v[{V_F01+2}:{V_F01+3}], v{V_FTR} offset:512", "f01")
            if t == 2 and b == 9:
                lg.wait("f01")
                f = f"v[{V_F01}:{V_F01+3}]"
                a(f"v_mfma_f32_16x16x32_bf16 v[{S0}:{S0+3}], {f}, {f}, 0")
                a(f"v_mfma_f32_16x16x32_bf16 v[{S1}:{S1+3}], v[{V_KX}:{V_KX+3}], {f}, 0")
                a(f"v_mfma_f32_16x16x32_bf16 v[{S2}:{S2+3}], v[{V_KX+6}:{V_KX+9}], {f}, 0")
    a("s_nop 4")
    for i in post(2): a(i)
    lg.op(f"ds_write_b64 v{V_FTW}, v[{accq(2)}:{accq(2)+1}] offset:1024", "fw2")
    V_F2 = accq(2) + 2
    lg.op(f"ds_read_b64_tr_b16 v[{V_F2}:{V_F2+1}], v{V_FTR} offset:1024", "f2")
    a(f"s_mul_i32 s{T0}, s{S_W}, 3072")
    a(f"v_add_u32 v{V_T}, s{T0}, v{V_SR1}")
    lg.wait("f2")
    f = f"v[{V_F2}:{V_F2+1}]"
    a(f"v_mfma_f32_16x16x16_bf16 v[{S0}:{S0+3}], {f}, {f}, v[{S0}:{S0+3}]")
    a(f"v_mfma_f32_16x16x16_bf16 v[{S1}:{S1+3}], v[{V_KX+4}:{V_KX+5}], {f}, v[{S1}:{S1+3}]")
    a(f"v_mfma_f32_16x16x16_bf16 v[{S2}:{S2+3}], v[{V_KX+10}:{V_KX+11}], {f}, v[{S2}:{S2+3}]")
    a("s_nop 5")
    lg.op(f"ds_write_b128 v{V_T}, v[{S0}:{S0+3}] offset:{L_SP-65536}", "sp")
    a("s_nop 0")
    lg.op(f"ds_write_b128 v{V_T}, v[{S1}:{S1+3}] offset:{L_SP-65536+1024}", "sp")
    a("s_nop 0")
    lg.op(f"ds_write_b128 v{V_T}, v[{S2}:{S2+3}] offset:{L_SP-65536+2048}", "sp")
    a(f"v_add_u32 v{V_A+32}, {L_SP}, v{V_XX}")
    a(f"v_add_u32 v{V_A+33}, {L_SP}, v{V_XM}")
    lg.drain()
    a("s_barrier")
    def reduce_softmax(vx, vm, stride):
        for w in range(4):
            lg.op(f"ds_read_b128 v[{V_A+4*w}:{V_A+4*w+3}], v{vx} offset:{w*stride}", f"r{w}")
            lg.op(f"ds_read_b32 v{V_A+16+w}, v{vm} offset:{w*stride}", f"r{w}")
        lg.wait("r1")
        for r in range(4): a(f"v_add_f32 v{V_A+r}, v{V_A+r}, v{V_A+4+r}")
        a(f"v_add_f32 v{V_A+16}, v{V_A+16}, v{V_A+17}")
        lg.wait("r3")
        for r in range(4): a(f"v_add_f32 v{V_A+8+r}, v{V_A+8+r}, v{V_A+12+r}")
        a(f"v_add_f32 v{V_A+18}, v{V_A+18}, v{V_A+19}")
        for r in range(4): a(f"v_add_f32 v{V_A+r}, v{V_A+r}, v{V_A+8+r}")
        a(f"v_add_f32 v{V_A+4}, v{V_A+16}, v{V_A+18}")
    reduce_softmax(V_A + 32, V_A + 33, 3072)
    s5 = [V_A + i for i in range(5)]
    softmax5(a, s5, V_A + 5, V_A + 6, V_A + 7)
    X0, X1, M0_ = V_A + 8, V_A + 9, V_A + 10
    R = V_A + 12
    a(f"v_cvt_pk_bf16_f32 v{X0}, v{V_A}, v{V_A+1}")
    a(f"v_cvt_pk_bf16_f32 v{X1}, v{V_A+2}, v{V_A+3}")
    dppmov(a, M0_, V_A + 4, "quad_perm:[1,0,3,2]")
    a(f"v_and_b32 v{X0}, 0x7fff7fff, v{X0}")
    a(f"v_and_b32 v{X1}, 0x7fff7fff, v{X1}")
    a(f"v_cvt_pk_bf16_f32 v{M0_}, v{V_A+4}, v{M0_}")
    dppmov(a, R, X0, "quad_perm:[0,1,0,1]")
    a(f"v_and_b32 v{M0_}, 0x7fff7fff, v{M0_}")
    dppmov(a, R + 1, X1, "quad_perm:[0,1,0,1]")
    dppmov(a, R + 2, X0, "quad_perm:[2,3,2,3]")
    dppmov(a, R + 3, X1, "quad_perm:[2,3,2,3]")
    dppmov(a, R + 4, M0_, "quad_perm:[0,0,0,0]")
    dppmov(a, R + 5, M0_, "quad_perm:[2,2,2,2]")
    sk = a.uid("nopub")
    a(f"""
s_cmp_ge_u32 s{S_W}, {KP}
s_cbranch_scc1 {sk}
s_mul_i32 s{S_OFF}, s{S_PS}, {KP*P_CS}
s_mul_i32 s{T0}, s{S_W}, {P_CS}
s_add_u32 s{S_OFF}, s{S_OFF}, s{T0}
s_add_u32 s{S_OFF}, s{S_OFF}, {physc(P_L)}
s_waitcnt vmcnt(0)
buffer_store_dwordx4 v[{R}:{R+3}], v{V_PX}, {WS}, s{S_OFF} offen sc1
buffer_store_dwordx2 v[{R+4}:{R+5}], v{V_PM}, {WS}, s{S_OFF} offen sc1
{sk}:
""")
    XA = V_A + 20
    a(f"s_mul_i32 s{T0}, s{S_W}, 6144")
    a(f"s_add_u32 s{T0}, s{T0}, {L_XP}")
    a(f"v_add_u32 v{V_T}, s{T0}, v{V_L16}")
    f01 = f"v[{V_F01}:{V_F01+3}]"; f2 = f"v[{V_F2}:{V_F2+1}]"
    for qt in range(2):
        q4 = f"v[{V_QX+qt*6}:{V_QX+qt*6+3}]"; q2 = f"v[{V_QX+qt*6+4}:{V_QX+qt*6+5}]"
        base = XA if qt == 0 else V_ST
        for kt in range(3):
            d = base + kt * 4
            a4 = f01 if kt == 0 else f"v[{V_KX+(kt-1)*6}:{V_KX+(kt-1)*6+3}]"
            a2 = f2 if kt == 0 else f"v[{V_KX+(kt-1)*6+4}:{V_KX+(kt-1)*6+5}]"
            a(f"v_mfma_f32_16x16x32_bf16 v[{d}:{d+3}], {a4}, {q4}, 0")
        for kt in range(3):
            d = base + kt * 4
            a2 = f2 if kt == 0 else f"v[{V_KX+(kt-1)*6+4}:{V_KX+(kt-1)*6+5}]"
            a(f"v_mfma_f32_16x16x16_bf16 v[{d}:{d+3}], {a2}, {q2}, v[{d}:{d+3}]")
    a("s_nop 7")
    for qt in range(2):
        base = XA if qt == 0 else V_ST
        for kt in range(3):
            d = base + kt * 4
            lg.op(f"ds_write_b128 v{V_T}, v[{d}:{d+3}] offset:{qt*3072 + kt*1024}", "xp")
    a(f"s_add_u32 s{S_SEG}, s{S_SEG}, 1")
    skq = a.uid("nokq")
    a(f"s_cmp_ge_u32 s{S_SEG}, {NSEG}")
    a(f"s_cbranch_scc1 {skq}")
    kq_load()
    a.label(skq)
    a(f"""
s_lshr_b32 s{T0}, s{S_W}, 1
s_mul_i32 s{T0}, s{T0}, 3072
s_and_b32 s{T1}, s{S_W}, 1
s_lshl_b32 s{T1}, s{T1}, 7
s_add_u32 s{T0}, s{T0}, s{T1}
s_add_u32 s{T0}, s{T0}, {L_XP}
v_add_u32 v{V_A+32}, s{T0}, v{V_XX}
v_add_u32 v{V_A+33}, s{T0}, v{V_XM}
""")
    lg.drain()
    a("s_barrier")
    reduce_softmax(V_A + 32, V_A + 33, 6144)
    a(f"""
v_lshrrev_b32 v{V_A+8}, 3, v1
s_lshl_b32 s{T0}, s{S_W}, 3
v_add_u32 v{V_A+8}, s{T0}, v{V_A+8}
v_and_b32 v{V_A+9}, 7, v1
v_lshlrev_b32 v{V_A+9}, 2, v{V_A+9}
v_sub_u32 v{V_A+8}, v{V_A+8}, v{V_A+9}      ; q - 4c
v_mov_b32 v{V_A+9}, 0xf149f2ca
""")
    for i in range(4):
        a(f"v_cmp_gt_i32 vcc, {i}, v{V_A+8}")
        a("s_nop 1")
        a(f"v_cndmask_b32 v{V_A+i}, v{V_A+i}, v{V_A+9}, vcc")
    softmax5(a, s5, V_A + 5, V_A + 6, V_A + 7)
    a(f"v_cvt_pk_bf16_f32 v{X0}, v{V_A}, v{V_A+1}")
    a(f"v_cvt_pk_bf16_f32 v{X1}, v{V_A+2}, v{V_A+3}")
    dppmov(a, M0_, V_A + 4, "quad_perm:[1,0,3,2]")
    a("s_nop 0")
    dppmov(a, R, X0, "quad_perm:[0,0,2,2]")
    dppmov(a, R + 1, X0, "quad_perm:[1,1,3,3]")
    dppmov(a, R + 2, X1, "quad_perm:[0,0,2,2]")
    dppmov(a, R + 3, X1, "quad_perm:[1,1,3,3]")
    a(f"v_cvt_pk_bf16_f32 v{M0_}, v{V_A+4}, v{M0_}")
    a(f"""
v_lshrrev_b32 v{V_A+20}, 3, v1
v_lshlrev_b32 v{V_A+20}, 4, v{V_A+20}      ; m*16
v_bfe_u32 v{V_A+21}, v1, 1, 2
v_lshlrev_b32 v{V_A+21}, 8, v{V_A+21}
s_lshr_b32 s{T0}, s{S_W}, 1
s_lshl_b32 s{T0}, s{T0}, 10
s_and_b32 s{T1}, s{S_W}, 1
s_lshl_b32 s{T1}, s{T1}, 7
s_add_u32 s{T0}, s{T0}, s{T1}
v_add3_u32 v{V_A+21}, v{V_A+21}, v{V_A+20}, s{T0}
v_bfe_u32 v{V_A+22}, v1, 2, 1
v_and_b32 v{V_A+23}, 2, v1
v_or_b32 v{V_A+22}, v{V_A+22}, v{V_A+23}
v_lshlrev_b32 v{V_A+22}, 2, v{V_A+22}
s_lshl_b32 s{T0}, s{S_W}, 7
s_add_u32 s{T0}, s{T0}, 2048
v_add3_u32 v{V_A+22}, v{V_A+22}, v{V_A+20}, s{T0}
s_sub_u32 s{T0}, s{S_SEG}, 1
s_lshl_b32 s{T0}, s{T0}, 5
s_add_u32 s{T0}, s{T0}, s{S_ID}
s_mul_i32 s{S_OFF}, s{T0}, {PXH}
s_add_u32 s{S_OFF}, s{S_OFF}, {PX}
s_mov_b32 exec_lo, 0x55555555
s_mov_b32 exec_hi, 0x55555555
buffer_store_dwordx4 v[{R}:{R+3}], v{V_A+21}, {WS}, s{S_OFF} offen sc1
buffer_store_dword v{M0_}, v{V_A+22}, {WS}, s{S_OFF} offen sc1
s_mov_b64 exec, -1
s_xor_b32 s{S_PS}, s{S_PS}, 1
""")
    ring3_inc(a, S_MS)
    a(f"s_cmp_lt_u32 s{S_SEG}, {NSEG}")
    a(f"s_cbranch_scc1 {lp}")
    a("s_waitcnt vmcnt(0)")
    a("s_barrier")
    for i in range(6): a(f"v_mov_b32 v{R+i}, 0")
    a(f"""
s_cmp_ge_u32 s{S_W}, {KP}
s_cbranch_scc1 {done}
s_mul_i32 s{S_OFF}, s{S_PS}, {KP*P_CS}
s_mul_i32 s{T0}, s{S_W}, {P_CS}
s_add_u32 s{S_OFF}, s{S_OFF}, s{T0}
s_add_u32 s{S_OFF}, s{S_OFF}, {physc(P_L)}
buffer_store_dwordx4 v[{R}:{R+3}], v{V_PX}, {WS}, s{S_OFF} offen sc1
buffer_store_dwordx2 v[{R+4}:{R+5}], v{V_PM}, {WS}, s{S_OFF} offen sc1
{done}:
""")
    stamp(a, 3)
    a("s_endpgm")
    return dict(V_SR1=V_SR1)


def role_cv(a, fail):
    S_GO, S_LW, S_G2, S_US = range(S_X, S_X + 4)
    L_MEM = 98304; L_VT = 108544
    V_MO = 4; V_MW = 7; V_L16 = 9; V_IDX = 10; V_VW = 11; V_VW2 = 12; V_VR = 13; V_UO = 14; V_T = 15
    V_A = 16; V_ACC = 56; V_ST = 96
    V_SR = 120; V_SR1 = 121; V_UO2 = 122; V_PO = 123; V_P = 112
    a.c("==== CV role")
    stamp(a, 0)
    srd(a, S_A0, 32, 7864320); srd(a, S_B0, 40, 7864320)
    w192_stage_setup(a, 4, 16)
    tr192_base(a, 7)
    a(f"""
s_mul_i32 s{S_GO}, s{S_ID}, 384
s_mul_i32 s{T0}, s{S_W}, {16*12288}
s_add_u32 s{S_GO}, s{S_GO}, s{T0}
s_mul_i32 s{S_LW}, s{S_W}, 6144
v_lshlrev_b32 v{V_L16}, 4, v1
s_waitcnt lgkmcnt(0)
""")
    seq1 = [('v', t, b) for b in range(10) for t in range(3)]
    seq2 = [('o', ct, b) for ct in range(10) for b in range(3)]
    ldsfr = [('v', t, b) for b in (3, 7) for t in (0, 2)] + [('v', 1, 5), ('v', 1, 9)] + [('o', ct, 1) for ct in (1, 3, 5, 6, 8, 9)]
    regfr = [f for f in seq1 + seq2 if f not in ldsfr]
    assert len(ldsfr) == 12 and len(regfr) == 48
    def wreg(f):
        i = regfr.index(f)
        return ('a', i * 8) if i < 32 else ('v', 128 + (i - 32) * 8)
    def dest(f):
        return ('v', 16 + ldsfr.index(f) * 8) if f in ldsfr else wreg(f)
    wstage_192(a, [S_A0], 4, 7, S_GO, S_LW, lambda mi, t, b: dest(('v', t, b)))
    a(f"""
s_mul_i32 s{S_G2}, s{S_ID}, 245760
s_mul_i32 s{S_LW}, s{S_W}, 10240
s_add_u32 s{S_G2}, s{S_G2}, s{S_LW}
v_lshrrev_b32 v2, 4, v1
v_lshlrev_b32 v2, 3, v2
v_bfe_u32 v3, v1, 2, 2
v_add_u32 v2, v2, v3
v_mul_u32_u24 v2, 1280, v2
v_and_b32 v3, 3, v1
v_lshlrev_b32 v3, 3, v3
s_mul_i32 s{T0}, s{S_W}, 320
v_add3_u32 v7, v2, v3, s{T0}
""")
    def o_issue(c, slot):
        for q in range(10):
            if q % 4 == 0:
                a(f"s_add_u32 m0, s{S_LW}, {slot*40960 + q*1024}")
                a(f"s_add_u32 s{S_OFF}, s{S_G2}, {c*40960 + q*1024}")
            a(f"buffer_load_dwordx4 v{V_L16}, s[{S_B0}:{S_B0+3}], s{S_OFF} offen offset:{(q%4)*1024} lds")
    issued = 4
    for c in range(4): o_issue(c, c)
    for c in range(6):
        slot = c % 4
        a(f"s_waitcnt vmcnt({(issued - 1 - c) * 10})")
        a("s_barrier")
        a(f"v_add_u32 v3, {slot*40960}, v7")
        for ct in range(10):
            k, r0 = dest(('o', ct, c >> 1))
            for h in range(2):
                r = r0 + (c & 1) * 4 + 2 * h
                a(f"ds_read_b64_tr_b16 {k}[{r}:{r+1}], v3 offset:{ct*32 + 4*h*1280}")
            if ct % 5 == 4: a("s_waitcnt lgkmcnt(0)")
        if issued < 6:
            a("s_barrier")
            o_issue(issued, slot); issued += 1
    a("s_barrier")
    a(f"s_mul_i32 s{T0}, s{S_W}, 24576")
    a(f"v_add_u32 v{V_SR}, s{T0}, v{V_L16}")
    a(f"v_add_u32 v{V_SR1}, 0x10000, v{V_L16}")
    for i in range(12):
        a(f"ds_write_b128 v{V_SR}, v[{16+i*8}:{19+i*8}] offset:{i*2048}")
        a(f"ds_write_b128 v{V_SR}, v[{20+i*8}:{23+i*8}] offset:{i*2048+1024}")
        if i % 4 == 3: a("s_waitcnt lgkmcnt(0)")
    stamp(a, 1)
    get_par(a, S_PAR, fail)
    mem_gather_setup(a, V_MO, V_MW, S_PAR, L_MEM)
    idx_setup(a, V_IDX)
    a(f"""
s_mul_i32 s{T0}, s{S_W}, 768
s_add_u32 s{T0}, s{T0}, {L_VT}
v_and_b32 v16, 15, v1
v_lshlrev_b32 v16, 4, v16
v_bfe_u32 v17, v1, 4, 1
v_lshlrev_b32 v17, 3, v17
v_add3_u32 v{V_VW2}, v16, v17, s{T0}
v_lshrrev_b32 v18, 5, v1
v_lshlrev_b32 v18, 8, v18
v_add_u32 v{V_VW}, v{V_VW2}, v18
v_add_u32 v{V_VW2}, 512, v{V_VW2}
v_lshrrev_b32 v16, 4, v1
v_lshlrev_b32 v16, 4, v16
v_and_b32 v17, 2, v1
v_bfe_u32 v18, v1, 2, 1
v_bfe_u32 v19, v1, 3, 1
v_lshlrev_b32 v19, 2, v19
v_add3_u32 v16, v16, v17, v18
v_add_u32 v16, v16, v19
v_lshlrev_b32 v16, 4, v16
v_and_b32 v17, 1, v1
v_lshlrev_b32 v17, 3, v17
v_add_u32 v16, v16, v17
v_add_u32 v{V_VR}, {L_VT}, v16
v_bfe_u32 v16, v1, 4, 1
v_lshlrev_b32 v16, 1, v16
v_lshrrev_b32 v17, 5, v1
v_add_u32 v16, v16, v17
s_mul_i32 s{T0}, s{S_W}, 10
v_add_u32 v16, s{T0}, v16
v_lshlrev_b32 v16, 14, v16
v_and_b32 v18, 15, v1
v_lshlrev_b32 v18, 4, v18
s_lshl_b32 s{T1}, s{S_ID}, 8
s_add_u32 s{T1}, s{T1}, s{S_PAR}
v_add3_u32 v{V_UO}, v16, v18, s{T1}
v_add_u32 v16, s{T0}, v17
v_add_u32 v16, 8, v16
v_lshlrev_b32 v16, 14, v16
v_bfe_u32 v19, v1, 4, 1
v_lshlrev_b32 v19, 3, v19
v_add3_u32 v16, v16, v18, v19
v_add_u32 v{V_UO2}, s{T1}, v16
""")
    UMB = physc(UM_L); UMS = physc(327680)
    def um_store(slot_sreg, regs3):
        a(f"s_mul_i32 s{S_OFF}, s{slot_sreg}, {UMS}")
        a(f"s_add_u32 s{S_OFF}, s{S_OFF}, {UMB}")
        a(f"s_add_u32 s{T0}, s{S_OFF}, {4*16384}")
        a(f"buffer_store_dwordx4 v[{regs3[0]}:{regs3[0]+3}], v{V_UO}, {WS}, s{S_OFF} offen sc1")
        a(f"buffer_store_dwordx4 v[{regs3[1]}:{regs3[1]+3}], v{V_UO}, {WS}, s{T0} offen sc1")
        a(f"buffer_store_dwordx2 v[{regs3[2]}:{regs3[2]+1}], v{V_UO2}, {WS}, s{S_OFF} offen sc1")
    for i in range(4): a(f"v_mov_b32 v{V_P+i}, -1")
    for sl in range(2):
        a(f"s_mov_b32 s{S_US}, {sl}")
        um_store(S_US, (V_P, V_P, V_P))
    dbg_signal(a, DBG_READY)
    a(f"s_mov_b32 s{S_SEG}, 0")
    a(f"s_mov_b32 s{S_MS}, 0")
    a(f"s_mov_b32 s{S_US}, 0")
    dbg_wait(a, DBG_READY, NCHAIN, fail)
    stamp(a, 2)
    lp = a.uid("cv_loop")
    a.label(lp)
    lg = Lgkm(a)
    order = seq1 + seq2
    lorder = [f for f in order if f in ldsfr]
    stq = {}
    def st_read(n):
        f = lorder[n]; i = ldsfr.index(f); r = V_ST + (n & 1) * 8
        lg.op(f"ds_read_b128 v[{r}:{r+3}], v{V_SR} offset:{i*2048}", f"st{n}")
        lg.op(f"ds_read_b128 v[{r+4}:{r+7}], v{V_SR} offset:{i*2048+1024}", f"st{n}")
    st_read(0); st_read(1)
    for i in range(40): a(f"v_mov_b32 v{V_ACC+i}, 0")
    for i in range(4): a(f"v_mov_b32 v{V_P+i}, -1")
    a(f"s_mul_i32 s{T2}, s{S_MS}, {KM*MEM_CS}")
    gather_poll(a, [(V_MO, 4, V_A), (V_MO + 1, 4, V_A + 4), (V_MO + 2, 4, V_A + 8)], T2, V_T, fail)
    lg.op(f"ds_write_b128 v{V_MW}, v[{V_A}:{V_A+3}]", "w")
    lg.op(f"ds_write_b128 v{V_MW}, v[{V_A+4}:{V_A+7}] offset:1024", "w")
    lg.op(f"ds_write_b128 v{V_MW+1}, v[{V_A+8}:{V_A+11}]", "w")
    lg.drain()
    a("s_barrier")
    for b in range(10):
        lg.op(f"ds_read_b128 v[{V_A+4*b}:{V_A+4*b+3}], v{V_SR1} offset:{L_MEM - 65536 + b*1024}", f"A{b}")
    sk = a.uid("nop")
    a(f"s_cmp_eq_u32 s{S_SEG}, 0")
    a(f"s_cbranch_scc1 {sk}")
    a(f"s_xor_b32 s{T2}, s{S_US}, 1")
    um_store(T2, (V_P, V_P, V_P))
    a.label(sk)
    def smf(f, acc, areg):
        if f in ldsfr:
            n = lorder.index(f)
            lg.wait(f"st{n}")
            r = V_ST + (n & 1) * 8
            w = f"v[{r}:{r+7}]"
        else:
            k, r = wreg(f); w = f"{k}[{r}:{r+7}]"
        a(f"v_smfmac_f32_16x16x64_bf16 v[{acc}:{acc+3}], v[{areg}:{areg+3}], {w}, v{V_IDX}")
        if f in ldsfr and n + 2 < len(lorder):
            st_read(n + 2)
    G1 = [V_ACC + 28, V_ACC + 32, V_ACC + 36]
    for f in seq1:
        _, t, b = f
        if t == 0: lg.wait(f"A{b}")
        smf(f, G1[t], V_A + 4 * b)
    a("s_nop 7")
    T4 = V_A
    for r in range(4): a(f"v_mov_b32 v{T4+r}, v{G1[2]+r}")
    for r in range(4): a(f"v_permlane32_swap_b32 v{G1[0]+r}, v{G1[1]+r}")
    for r in range(4): a(f"v_permlane32_swap_b32 v{G1[2]+r}, v{T4+r}")
    for r in range(4): a(f"v_add_f32 v{G1[0]+r}, v{G1[0]+r}, v{G1[1]+r}")
    a(f"v_cvt_pk_bf16_f32 v{T4+4}, v{G1[0]}, v{G1[0]+1}")
    a(f"v_cvt_pk_bf16_f32 v{T4+5}, v{G1[0]+2}, v{G1[0]+3}")
    lg.op(f"ds_write_b64 v{V_VW}, v[{T4+4}:{T4+5}]", "vw")
    for r in range(4): a(f"v_add_f32 v{G1[2]+r}, v{G1[2]+r}, v{T4+r}")
    a(f"v_cvt_pk_bf16_f32 v{T4+6}, v{G1[2]}, v{G1[2]+1}")
    a(f"v_cvt_pk_bf16_f32 v{T4+7}, v{G1[2]+2}, v{G1[2]+3}")
    lg.op(f"ds_write_b64 v{V_VW2}, v[{T4+6}:{T4+7}]", "vw")
    for i in range(12): a(f"v_mov_b32 v{V_ACC+28+i}, 0")
    lg.drain()
    a("s_barrier")
    VA = V_A + 8
    for b in range(3):
        for u in range(2):
            lg.op(f"ds_read_b64_tr_b16 v[{VA+4*b+2*u}:{VA+4*b+2*u+1}], v{V_VR} offset:{b*1024 + u*128}", f"va{b}")
    def acc2(ct): return V_ACC + ct * 4
    PK = V_A + 20
    def post_pair(ta, tb, x, y):
        A_, B_ = acc2(ta), acc2(tb)
        ins = [f"v_permlane32_swap_b32 v{A_+r}, v{B_+r}" for r in range(4)]
        ins += [f"v_add_f32 v{A_+r}, v{A_+r}, v{B_+r}" for r in range(4)]
        ins += [f"v_cvt_pk_bf16_f32 v{x}, v{A_}, v{A_+1}", f"v_cvt_pk_bf16_f32 v{y}, v{A_+2}, v{A_+3}"]
        ins += [f"v_min_u32 v{x}, -2, v{x}", f"v_min_u32 v{y}, -2, v{y}"]
        return ins
    def post_set(t0, p):
        ins = post_pair(t0, t0 + 1, p, p + 2) + post_pair(t0 + 2, t0 + 3, p + 1, p + 3)
        ins += ["s_nop 1", f"v_permlane16_swap_b32 v{p}, v{p+1}", f"v_permlane16_swap_b32 v{p+2}, v{p+3}"]
        return ins
    pend = []
    for f in seq2:
        _, ct, b = f
        if ct == 0: lg.wait(f"va{b}")
        smf(f, acc2(ct), VA + 4 * b)
        if ct == 6 and b == 2: pend += post_set(0, PK)
        if ct >= 7:
            for _ in range(3):
                if pend: a(pend.pop(0))
    for i in pend: a(i)
    for i in post_set(4, PK + 4)[:12]: a(i)
    a("s_nop 1")
    for i in post_set(4, PK + 4)[12:]: a(i)
    for i in post_pair(8, 9, PK + 8, PK + 9): a(i)
    a("s_nop 1")
    a(f"v_permlane16_swap_b32 v{PK+8}, v{PK+9}")
    a("s_waitcnt vmcnt(0)")
    um_store(S_US, (PK, PK + 4, PK + 8))
    a(f"s_xor_b32 s{S_US}, s{S_US}, 1")
    ring3_inc(a, S_MS)
    a(f"""
s_add_u32 s{S_SEG}, s{S_SEG}, 1
s_cmp_lt_u32 s{S_SEG}, {NSEG}
s_cbranch_scc1 {lp}
""")
    stamp(a, 3)
    a("s_endpgm")

def calibrate(a):
    sk = a.uid("cal_skip")
    a(f"""
s_cmp_lg_u32 s{S_ID}, 0
s_cbranch_scc1 {sk}
s_cmp_lg_u32 s{S_W}, 0
s_cbranch_scc1 {sk}
s_mov_b32 s{S_X+10}, 0
s_mov_b32 s{S_X+11}, 0
v_mov_b32 v4, 0
s_mov_b64 exec, 1
""")
    for rep in range(5):
        for p in range(2):
            off = 0x1F0000 + p * 0x2000 + rep * 256 + (rep & 1) * 4096
            a(f"""
v_mov_b32 v3, {off}
buffer_store_dword v4, v3, {WS}, 0 offen sc1
s_waitcnt vmcnt(0)
buffer_load_dword v2, v3, {WS}, 0 offen sc1
s_waitcnt vmcnt(0)
buffer_store_dword v4, v3, {WS}, 0 offen sc1
s_waitcnt vmcnt(0)
s_memtime s[{S_X+12}:{S_X+13}]
s_waitcnt lgkmcnt(0)
buffer_load_dword v2, v3, {WS}, 0 offen sc1
s_waitcnt vmcnt(0)
s_memtime s[{S_X+14}:{S_X+15}]
s_waitcnt lgkmcnt(0)
s_sub_u32 s{T0}, s{S_X+14}, s{S_X+12}
""")
            if rep > 0:
                a(f"s_add_u32 s{S_X+10+p}, s{S_X+10+p}, s{T0}")
    a(f"""
s_cmp_le_u32 s{S_X+10}, s{S_X+11}
s_cselect_b32 s{T0}, 1, 2
v_mov_b32 v2, s{T0}
v_mov_b32 v3, {DBG_PAR}
buffer_store_dword v2, v3, {DBG}, 0 offen sc1
s_mov_b64 exec, -1
{sk}:
""")

def role_r(a, fail):
    S_UXO, S_NEED, S_US, S_XOK = range(S_X, S_X + 4)
    L_RP = 0
    L_OP = 8192
    V_PO = 4
    V_L16 = 10; V_IDX = 11; V_UM = 12; V_MO = 13; V_T = 14; V_RW = 15; V_RR = 16; V_PG = 17
    V_PXO = 18; V_PXM = 19; V_OW = 20; V_OR = 21; V_OO = 22; V_BO = 23; V_GO = 24; V_BV = 25; V_GV = 26
    V_ACC = 28
    V_PA = 32
    V_OA = 52
    V_TM = 60
    V_PX = 80
    V_U = [160, 200, ('a', 0)]
    def U(n, off, cnt):
        b = V_U[n]
        return f"a[{b[1]+off}:{b[1]+off+cnt-1}]" if isinstance(b, tuple) else f"v[{b+off}:{b+off+cnt-1}]"
    a.c("==== R role")
    stamp(a, 0)
    srd(a, S_A0, 8, 10240)
    srd(a, S_B0, 104, 2621440)
    calibrate(a)
    get_par(a, S_PAR, fail)
    idx_setup(a, V_IDX)
    a(f"""
v_lshlrev_b32 v{V_L16}, 4, v1
s_lshl_b32 s{T0}, s{S_W}, 3
v_lshrrev_b32 v60, 5, v1
v_add_u32 v60, s{T0}, v60
v_mul_u32_u24 v60, 640, v60
v_and_b32 v61, 31, v1
v_lshlrev_b32 v61, 4, v61
v_add_u32 v60, v60, v61
""")
    for i in range(4):
        a(f"v_add_u32 v61, {1280*i}, v60")
        phys(a, V_PO + i, 61, 62, S_PAR)
    a(f"""
v_lshrrev_b32 v60, 4, v1
v_lshlrev_b32 v60, 1, v60
v_add_u32 v60, s{T0}, v60
v_mul_u32_u24 v60, 640, v60
v_and_b32 v61, 15, v1
v_lshlrev_b32 v61, 3, v61
v_add_u32 v60, v60, v61
v_add_u32 v60, 512, v60
""")
    phys(a, V_PO + 4, 60, 62, S_PAR)
    a("v_add_u32 v60, 640, v60")
    phys(a, V_PO + 5, 60, 62, S_PAR)
    a(f"""
s_lshl_b32 s{T0}, s{S_ID}, 14
s_add_u32 s{T0}, s{T0}, s{S_PAR}
s_lshl_b32 s{T1}, s{S_W}, 11
s_add_u32 s{T0}, s{T0}, s{T1}
v_add_u32 v{V_UM}, s{T0}, v{V_L16}
s_lshl_b32 s{T0}, s{S_ID}, 8
v_lshrrev_b32 v60, 2, v1
v_lshlrev_b32 v60, 4, v60
v_add_u32 v60, s{T0}, v60
""")
    phys(a, V_MO, 60, 62, S_PAR)
    if KM > 1:
        a(f"""
v_and_b32 v60, 3, v1
v_min_u32 v60, {KM-1}, v60
v_mul_u32_u24 v60, {MEM_CS}, v60
v_add_u32 v{V_MO}, v{V_MO}, v60
""")
    a(f"""
v_lshrrev_b32 v60, 4, v1
v_lshlrev_b32 v60, 8, v60
v_and_b32 v61, 15, v1
v_lshlrev_b32 v61, 2, v61
s_lshl_b32 s{T0}, s{S_W}, 10
v_add3_u32 v{V_RW}, v60, v61, s{T0}
v_bfe_u32 v60, v1, 2, 3
v_lshlrev_b32 v60, 6, v60
v_and_b32 v61, 3, v1
v_lshlrev_b32 v61, 4, v61
v_lshrrev_b32 v62, 5, v1
v_lshlrev_b32 v62, 3, v62
v_add3_u32 v{V_RR}, v60, v61, v62
v_and_b32 v60, 31, v1
v_lshlrev_b32 v60, 2, v60
v_add_u32 v{V_PG}, {PROG_U}, v60
s_mul_i32 s{T0}, s{S_W}, {8*PXH}
v_add_u32 v{V_PXO}, s{T0}, v{V_L16}
v_lshrrev_b32 v60, 4, v1
v_mul_u32_u24 v60, {PXH}, v60
v_and_b32 v61, 15, v1
v_lshlrev_b32 v61, 4, v61
v_add3_u32 v{V_PXM}, v60, v61, s{T0}
v_add_u32 v{V_PXM}, 2048, v{V_PXM}
s_lshl_b32 s{T0}, s{S_W}, 10
v_add_u32 v{V_OW}, s{T0}, v{V_RW}
v_add_u32 v{V_OW}, {L_OP}, v{V_OW}
v_lshlrev_b32 v{V_OR}, 3, v0
v_add_u32 v{V_OR}, {L_OP}, v{V_OR}
v_lshrrev_b32 v60, 3, v0
v_mul_u32_u24 v61, 1280, v60
v_and_b32 v62, 7, v0
v_lshlrev_b32 v62, 2, v62
s_lshl_b32 s{T0}, s{S_ID}, 5
v_add3_u32 v{V_OO}, v61, v62, s{T0}
s_lshl_b32 s{T0}, s{S_ID}, 10
s_add_u32 s{T0}, s{T0}, {BASE}
v_lshlrev_b32 v{V_BO}, 2, v0
v_add_u32 v{V_BO}, s{T0}, v{V_BO}
v_lshlrev_b32 v{V_GO}, 2, v60
v_add_u32 v{V_GO}, {G_OFF}, v{V_GO}
s_lshl_b32 s{S_UXO}, s{S_ID}, 15
s_lshl_b32 s{T0}, s{S_W}, 13
s_add_u32 s{S_UXO}, s{S_UXO}, s{T0}
s_add_u32 s{S_UXO}, s{S_UXO}, {UX}
""")
    def mem_store(slot_sreg, r):
        a(f"s_mul_i32 s{S_OFF}, s{slot_sreg}, {KM*MEM_CS}")
        a(f"buffer_store_dwordx4 v[{r}:{r+3}], v{V_MO}, {WS}, s{S_OFF} offen sc1")
    def quad_gather(src, r):
        for q in range(4):
            dppmov(a, r + q, src, f"quad_perm:[{q},{q},{q},{q}]")
    w0 = a.uid("w0skip")
    for i in range(4): a(f"v_mov_b32 v{V_TM+16+i}, -1")
    V_NEG = V_TM + 16
    a(f"s_cmp_lg_u32 s{S_W}, 0")
    a(f"s_cbranch_scc1 {w0}")
    for sl in range(3):
        a(f"s_mov_b32 s{S_MS}, {sl}")
        mem_store(S_MS, V_NEG)
    a.label(w0)
    dbg_signal(a, DBG_READY)
    a(f"""
v_bfe_u32 v60, v1, 2, 3
v_mul_u32_u24 v60, 1280, v60
v_and_b32 v61, 3, v1
v_lshlrev_b32 v61, 3, v61
v_lshrrev_b32 v62, 5, v1
v_lshlrev_b32 v62, 2, v62
v_add3_u32 v60, v60, v61, v62
s_lshl_b32 s{T0}, s{S_ID}, 5
buffer_load_dword v63, v60, s[{S_A0}:{S_A0+3}], s{T0} offen
s_mov_b32 s{S_SEG}, 0
s_mov_b32 s{S_MS}, 0
s_mov_b32 s{S_PS}, 0
s_mov_b32 s{S_PROG}, 0
s_mov_b32 s{S_XOK}, 0
""")
    if roles_bulk.MERGED: dbg_wait(a, DBG_READYB, 128, fail)
    dbg_wait(a, DBG_READY, NCHAIN, fail)
    w0 = a.uid("w0skip")
    a(f"v_min_u32 v63, -2, v63")
    a(f"s_cmp_lg_u32 s{S_W}, 0")
    a(f"s_cbranch_scc1 {w0}")
    a("s_nop 0")
    quad_gather(63, 64)
    mem_store(S_MS, 64)
    a.label(w0)
    def ux_load(n, seg_sreg):
        ok = a.uid("ux_ok"); lp = a.uid("ux")
        a(f"""
s_add_u32 s{S_NEED}, s{seg_sreg}, 1
s_cmp_ge_u32 s{S_PROG}, s{S_NEED}
s_cbranch_scc1 {ok}
s_mov_b32 s{S_SPIN}, 0
{lp}:
buffer_load_dword v2, v{V_PG}, {WS}, 0 offen sc1
s_waitcnt vmcnt(0)
""")
        for pm in ("quad_perm:[1,0,3,2]", "quad_perm:[2,3,0,1]", "row_half_mirror", "row_mirror"):
            a("s_nop 1")
            a(f"v_min_u32_dpp v2, v2, v2 {pm} row_mask:0xf bank_mask:0xf")
        a(f"""
s_nop 0
v_readlane_b32 s{T0}, v2, 0
v_readlane_b32 s{T1}, v2, 16
s_min_u32 s{S_PROG}, s{T0}, s{T1}
s_cmp_ge_u32 s{S_PROG}, s{S_NEED}
s_cbranch_scc1 {ok}
s_sleep 2
s_add_u32 s{S_SPIN}, s{S_SPIN}, 1
s_cmp_lt_u32 s{S_SPIN}, {SPIN_MAX}
s_cbranch_scc1 {lp}
s_branch {fail}
{ok}:
s_mul_i32 s{S_OFF}, s{seg_sreg}, {40*32768}
s_add_u32 s{S_OFF}, s{S_OFF}, s{S_UXO}
s_add_u32 s{T0}, s{S_OFF}, 4096
""")
        for i in range(8):
            so = S_OFF if i < 4 else T0
            a(f"buffer_load_dwordx4 {U(n, 4*i, 4)}, v{V_L16}, {WS}, s{so} offen offset:{(i%4)*1024} sc1")
    ux_load(0, S_SEG)
    stamp(a, 2)
    UMB = physc(UM_L); UMS = physc(327680)
    loads = [(V_PO + i, 4, V_PA + 4 * i) for i in range(4)] + [(V_PO + 4, 2, V_PA + 16), (V_PO + 5, 2, V_PA + 18)]
    done = a.uid("r_done"); top = a.uid("r_top")
    def out_stage(n_prev, lg):
        a(f"s_sub_u32 s{T2}, s{S_SEG}, 1")
        a(f"s_mul_i32 s{S_OFF}, s{T2}, {32*PXH}")
        a(f"s_add_u32 s{S_OFF}, s{S_OFF}, {PX}")
        for hh in range(8):
            a(f"s_add_u32 s{T0}, s{S_OFF}, {hh*PXH}")
            for tt in range(2):
                r = V_PX + (hh * 2 + tt) * 4
                a(f"buffer_load_dwordx4 v[{r}:{r+3}], v{V_PXO}, {WS}, s{T0} offen offset:{tt*1024} sc1")
        for i in range(2):
            a(f"s_add_u32 s{T0}, s{S_OFF}, {4*i*PXH}")
            for tt in range(2):
                r = V_PX + 64 + (i * 2 + tt) * 4
                a(f"buffer_load_dwordx4 v[{r}:{r+3}], v{V_PXM}, {WS}, s{T0} offen offset:{tt*256} sc1")
        xo = a.uid("xok")
        a(f"s_cmp_lg_u32 s{S_XOK}, 0")
        a(f"s_cbranch_scc1 {xo}")
        dbg_wait(a, DBG_X3, 20, fail)
        a(f"s_mov_b32 s{S_XOK}, 1")
        a.label(xo)
        a(f"s_mul_i32 s{T0}, s{T2}, 40960")
        a(f"buffer_load_dword v{V_BV}, v{V_BO}, {WS}, s{T0} offen sc1")
        a(f"s_lshl_b32 s{T0}, s{T2}, 7")
        a(f"buffer_load_dword v{V_GV}, v{V_GO}, {WS}, s{T0} offen sc1")
    def out_compute(n_prev, lg, younger):
        for ks in range(10):
            a(f"s_waitcnt vmcnt({min(63, younger + 2 + (9-ks)*2)})")
            for tt in range(2):
                r = V_PX + (ks * 2 + tt) * 4
                acc = V_OA + tt * 4
                c = "0" if ks == 0 else f"v[{acc}:{acc+3}]"
                a(f"v_mfma_f32_16x16x32_bf16 v[{acc}:{acc+3}], v[{r}:{r+3}], {U(n_prev, 4*ks, 4)}, {c}")
        a("s_nop 6")
        a("s_barrier")
        for tt in range(2):
            for r in range(4):
                lg.op(f"ds_write_b32 v{V_OW}, v{V_OA+tt*4+r} offset:{tt*1024 + r*64}", "ow")
        lg.drain()
        a("s_barrier")
        for w in range(4):
            lg.op(f"ds_read_b64 v[{V_TM+2*w}:{V_TM+2*w+1}], v{V_OR} offset:{w*2048}", "or")
        lg.drain()
        t = V_TM
        a(f"""
v_add_f32 v{t}, v{t}, v{t+2}
v_add_f32 v{t+1}, v{t+1}, v{t+3}
v_add_f32 v{t+4}, v{t+4}, v{t+6}
v_add_f32 v{t+5}, v{t+5}, v{t+7}
v_add_f32 v{t}, v{t}, v{t+4}
v_add_f32 v{t+1}, v{t+1}, v{t+5}
v_cvt_pk_bf16_f32 v{t}, v{t}, v{t+1}
s_waitcnt vmcnt({younger})
v_and_b32 v{t+1}, 0xffff0000, v{t}
v_lshlrev_b32 v{t}, 16, v{t}
v_mul_f32 v{t}, v{t}, v{V_GV}
v_mul_f32 v{t+1}, v{t+1}, v{V_GV}
v_cvt_pk_bf16_f32 v{t}, v{t}, v{t+1}
v_lshlrev_b32 v{t+2}, 16, v{V_BV}
v_and_b32 v{t+3}, 0xffff0000, v{V_BV}
v_and_b32 v{t+1}, 0xffff0000, v{t}
v_lshlrev_b32 v{t}, 16, v{t}
v_add_f32 v{t}, v{t}, v{t+2}
v_add_f32 v{t+1}, v{t+1}, v{t+3}
v_cvt_pk_bf16_f32 v{t}, v{t}, v{t+1}
s_sub_u32 s{T2}, s{S_SEG}, 1
s_mul_i32 s{T0}, s{T2}, 40960
buffer_store_dword v{t}, v{V_OO}, s[{S_B0}:{S_B0+3}], s{T0} offen
""")
    a.label(top)
    for n in range(3):
        lg = Lgkm(a)
        nprev = (n + 2) % 3; nnext = (n + 1) % 3
        for i in range(4): a(f"v_mov_b32 v{V_ACC+i}, 0")
        a(f"s_mul_i32 s{T2}, s{S_PS}, {KP*P_CS}")
        a(f"s_add_u32 s{T2}, s{T2}, {physc(P_L)}")
        gather_poll(a, loads, T2, V_T, fail)
        last = a.uid("r_last"); nopub = a.uid("r_nopub"); noout = a.uid("r_noout")
        a(f"s_cmp_eq_u32 s{S_SEG}, {NSEG}")
        a(f"s_cbranch_scc1 {last}")
        a(f"s_mul_i32 s{T2}, s{S_PS}, {UMS}")
        a(f"s_add_u32 s{T2}, s{T2}, {UMB}")
        b = V_U[n]
        if isinstance(b, tuple):
            lp = a.uid("gu"); ok = a.uid("guo")
            a(f"s_mov_b32 s{S_SPIN}, 0")
            a.label(lp)
            a(f"buffer_load_dwordx4 v[{V_TM}:{V_TM+3}], v{V_UM}, {WS}, s{T2} offen sc1")
            a(f"buffer_load_dwordx4 v[{V_TM+4}:{V_TM+7}], v{V_UM}, {WS}, s{T2} offen offset:1024 sc1")
            ur = V_TM
        else:
            lp = a.uid("gu"); ok = a.uid("guo")
            a(f"s_mov_b32 s{S_SPIN}, 0")
            a.label(lp)
            a(f"buffer_load_dwordx4 v[{b+32}:{b+35}], v{V_UM}, {WS}, s{T2} offen sc1")
            a(f"buffer_load_dwordx4 v[{b+36}:{b+39}], v{V_UM}, {WS}, s{T2} offen offset:1024 sc1")
            ur = b + 32
        a("s_waitcnt vmcnt(0)")
        check(a, list(range(ur, ur + 8)), V_T)
        a(f"""
s_cbranch_vccz {ok}
s_add_u32 s{S_SPIN}, s{S_SPIN}, 1
s_cmp_lt_u32 s{S_SPIN}, {SPIN_MAX}
s_cbranch_scc1 {lp}
s_branch {fail}
{ok}:
""")
        if isinstance(b, tuple):
            for i in range(8): a(f"v_accvgpr_write_b32 a{b[1]+32+i}, v{V_TM+i}")
        a(f"s_cmp_eq_u32 s{S_SEG}, {NSEG-1}")
        a(f"s_cbranch_scc1 {nopub}")
        for i in range(5):
            bop = U(n, 8 * i, 8) if (i < 4 or not isinstance(b, tuple)) else f"v[{V_TM}:{V_TM+7}]"
            a(f"v_smfmac_f32_16x16x64_bf16 v[{V_ACC}:{V_ACC+3}], v[{V_PA+4*i}:{V_PA+4*i+3}], {bop}, v{V_IDX}")
        ring3_inc(a, S_MS)
        a("s_nop 4")
        for r in range(4):
            lg.op(f"ds_write_b32 v{V_RW}, v{V_ACC+r} offset:{r*64}", "rw")
        lg.drain()
        a("s_barrier")
        w0 = a.uid("w0skip")
        a(f"s_cmp_lg_u32 s{S_W}, 0")
        a(f"s_cbranch_scc1 {w0}")
        t = V_TM + 8
        for w in range(4):
            d = V_PA + 4 * w
            a(f"ds_read2_b64 v[{d}:{d+3}], v{V_RR} offset0:{w*128} offset1:{w*128+64}" if w < 2 else
              f"ds_read2_b64 v[{d}:{d+3}], v{t+7} offset0:{(w-2)*128} offset1:{(w-2)*128+64}")
            if w == 0: a(f"v_add_u32 v{t+7}, 2048, v{V_RR}")
        p = V_PA
        a(f"""
s_waitcnt lgkmcnt(2)
v_add_f32 v{p}, v{p}, v{p+2}
v_add_f32 v{p+1}, v{p+1}, v{p+3}
v_add_f32 v{p+4}, v{p+4}, v{p+6}
v_add_f32 v{p+5}, v{p+5}, v{p+7}
v_add_f32 v{p}, v{p}, v{p+4}
v_add_f32 v{p+1}, v{p+1}, v{p+5}
s_waitcnt lgkmcnt(0)
v_add_f32 v{p+8}, v{p+8}, v{p+10}
v_add_f32 v{p+9}, v{p+9}, v{p+11}
v_add_f32 v{p+12}, v{p+12}, v{p+14}
v_add_f32 v{p+13}, v{p+13}, v{p+15}
v_add_f32 v{p+8}, v{p+8}, v{p+12}
v_add_f32 v{p+9}, v{p+9}, v{p+13}
v_add_f32 v{p}, v{p}, v{p+8}
v_add_f32 v{p+1}, v{p+1}, v{p+9}
v_cvt_pk_bf16_f32 v{p}, v{p}, v{p+1}
v_min_u32 v{p}, -2, v{p}
s_nop 1
""")
        quad_gather(p, p + 4)
        mem_store(S_MS, p + 4)
        a(f"s_add_u32 s{T2}, s{S_MS}, 2")
        a(f"s_cmp_ge_u32 s{T2}, 3")
        a(f"s_cselect_b32 s{T0}, 3, 0")
        a(f"s_sub_u32 s{T2}, s{T2}, s{T0}")
        mem_store(T2, V_NEG)
        a.label(w0)
        a.label(nopub)
        a(f"s_cmp_eq_u32 s{S_SEG}, 0")
        a(f"s_cbranch_scc1 {noout}")
        out_stage(nprev, lg)
        nx = a.uid("r_nx")
        a(f"s_add_u32 s{T3}, s{S_SEG}, 1")
        a(f"s_min_u32 s{T3}, s{T3}, {NSEG-1}")
        ux_load(nnext, T3)
        out_compute(nprev, lg, 8)
        a(f"s_branch {nx}")
        a.label(noout)
        a(f"s_add_u32 s{T3}, s{S_SEG}, 1")
        ux_load(nnext, T3)
        a.label(nx)
        a(f"s_add_u32 s{S_SEG}, s{S_SEG}, 1")
        a(f"s_xor_b32 s{S_PS}, s{S_PS}, 1")
        cont = a.uid("r_cont")
        a(f"s_branch {cont}")
        a.label(last)
        out_stage(nprev, lg)
        out_compute(nprev, lg, 0)
        a(f"s_branch {done}")
        a.label(cont)
    a(f"s_branch {top}")
    a.label(done)
    stamp(a, 3)
    a("s_endpgm")


NLOG2E = -math.log2(math.e)
def rbf(a, d, s):
    a(f"v_cvt_pk_bf16_f32 v{d}, v{s}, v{s}")
    a(f"v_and_b32 v{d}, 0xffff0000, v{d}")
def sigmoid(a, d, s, s_nl):
    a(f"v_mul_f32 v{d}, s{s_nl}, v{s}")
    a(f"v_exp_f32 v{d}, v{d}")
    a("s_nop 0")
    a(f"v_add_f32 v{d}, 1.0, v{d}")
    a(f"v_rcp_f32 v{d}, v{d}")
    a("s_nop 0")

def role_x(a, fail):
    S_NL, S_GO, S_LW = S_X, S_X + 1, S_X + 2
    S_K = S_X + 4
    S_E0 = 64
    S_F0 = 68
    a.c("==== X role")
    stamp(a, 0)
    srd(a, S_A0, 0, 2621440)
    srd(a, S_B0, 72, 1966080)
    srd(a, S_C0, 80, 1966080)
    srd(a, S_D0, 88, 1966080)
    srd(a, S_E0, 64, 1280)
    srd(a, S_F0, 96, 1280)
    X_ = f"s[{S_A0}:{S_A0+3}]"
    a(f"""
s_mov_b32 s{S_NL}, {f32hex(NLOG2E)}
v_lshrrev_b32 v4, 3, v1
v_mul_u32_u24 v4, 3072, v4
v_and_b32 v5, 7, v1
v_lshlrev_b32 v5, 4, v5
v_add_u32 v4, v4, v5
s_lshl_b32 s{S_GO}, s{S_ID}, 7
s_mul_i32 s{T0}, s{S_W}, {32*3072}
s_add_u32 s{S_GO}, s{S_GO}, s{T0}
s_lshl_b32 s{S_LW}, s{S_W}, 12
s_waitcnt lgkmcnt(0)
""")
    for c in range(10):
        srd_s = S_B0 if c < 5 else S_C0
        for q in range(4):
            a(f"s_add_u32 m0, s{S_LW}, {c*16384 + q*1024}")
            a(f"s_add_u32 s{S_OFF}, s{S_GO}, {((c%5)*128 + q*8)*3072}")
            a(f"buffer_load_dwordx4 v4, s[{srd_s}:{srd_s+3}], s{S_OFF} offen lds")
    nox1 = a.uid("nox1")
    a(f"s_cmp_ge_u32 s{S_ID}, 16")
    a(f"s_cbranch_scc1 {nox1}")
    VW = 16; VXF = 96
    for i in range(80): a(f"v_mov_b32 v{VW+i}, 0")
    a(f"""
v_lshrrev_b32 v5, 4, v1
v_lshlrev_b32 v5, 4, v5           ; g*16
v_and_b32 v6, 15, v1
v_mul_u32_u24 v7, 1280, v6
v_add_u32 v7, v7, v5              ; n*1280 + g*16
s_lshl_b32 s{T2}, s{S_ID}, 2
s_add_u32 s{T2}, s{T2}, s{S_W}
s_mul_i32 s{T3}, s{T2}, 40960
s_mov_b32 exec_lo, 0x11111111
s_mov_b32 exec_hi, 0x11111111
""")
    for kk in range(20):
        a(f"buffer_load_dwordx4 v[{VW+4*kk}:{VW+4*kk+3}], v5, s[{S_E0}:{S_E0+3}], 0 offen offset:{64*kk}")
    a("s_mov_b32 exec_lo, 0x22222222")
    a("s_mov_b32 exec_hi, 0x22222222")
    a("s_waitcnt vmcnt(0)")
    for kk in range(20):
        a(f"buffer_load_dwordx4 v[{VW+4*kk}:{VW+4*kk+3}], v5, s[{S_F0}:{S_F0+3}], 0 offen offset:{64*kk}")
    a("s_mov_b64 exec, -1")
    for tl in range(2):
        a(f"s_add_u32 s{T0}, s{T3}, {tl*20480}")
        for kk in range(20):
            r = VXF + tl * 80 + 4 * kk
            a(f"buffer_load_dwordx4 v[{r}:{r+3}], v7, {X_}, s{T0} offen offset:{64*kk}")
    a("s_waitcnt vmcnt(0)")
    for kk in range(20):
        for tl in range(2):
            r = VXF + tl * 80 + 4 * kk
            d = 8 + tl * 4
            c = "0" if kk == 0 else f"v[{d}:{d+3}]"
            a(f"v_mfma_f32_16x16x32_bf16 v[{d}:{d+3}], v[{VW+4*kk}:{VW+4*kk+3}], v[{r}:{r+3}], {c}")
    a("s_nop 7")
    a(f"""
v_lshrrev_b32 v16, 5, v1
v_lshlrev_b32 v16, 10, v16
v_lshlrev_b32 v17, 5, v6
v_bfe_u32 v18, v1, 4, 1
v_lshlrev_b32 v18, 4, v18
v_add3_u32 v16, v16, v17, v18
v_lshlrev_b32 v17, 2, v6          ; n*4
""")
    for tl in range(2):
        d = 8 + tl * 4
        a(f"""
v_cvt_pk_bf16_f32 v20, v{d}, v{d}
v_and_b32 v20, 0xffff0000, v20
v_ashrrev_i32 v21, 31, v20
v_or_b32 v21, 0x80000000, v21
v_xor_b32 v20, v20, v21
v_and_b32 v20, 0xffff0000, v20
s_lshl_b32 s{T0}, s{T2}, 5
s_add_u32 s{T0}, s{T0}, {tl*16}
s_sub_u32 s{T1}, 2047, s{T0}
v_sub_u32 v21, s{T1}, v6
v_or_b32 v20, v20, v21
""")
        rbf(a, 21, d + 1)
        sigmoid(a, 22, 21, S_NL)
        rbf(a, 22, 22)
        a(f"v_sub_f32 v23, 1.0, v22")
        rbf(a, 23, 23)
        a(f"""
s_lshl_b32 s{T0}, s{T0}, 2
s_add_u32 s{T1}, s{T0}, {R_OFF}
s_add_u32 s{T0}, s{T0}, {G_OFF}
s_mov_b64 exec, 0xffff
buffer_store_dword v20, v17, {WS}, s{T1} offen sc1
buffer_store_dword v22, v17, {WS}, s{T0} offen sc1
s_mov_b64 exec, -1
s_add_u32 s{S_OFF}, s{T3}, {BASE + tl*512}
""")
        for kk in range(20):
            r = VXF + tl * 80 + 4 * kk
            for i in range(4):
                a(f"v_lshlrev_b32 v24, 16, v{r+i}")
                a(f"v_and_b32 v25, 0xffff0000, v{r+i}")
                a(f"v_mul_f32 v24, v24, v23")
                a(f"v_mul_f32 v25, v25, v23")
                a(f"v_cvt_pk_bf16_f32 v{r+i}, v24, v25")
            a(f"buffer_store_dwordx4 v[{r}:{r+3}], v16, {WS}, s{S_OFF} offen offset:{(kk&1)*2048} sc1")
            if kk & 1: a(f"s_add_u32 s{S_OFF}, s{S_OFF}, 4096")
    dbg_signal(a, DBG_X1)
    a.label(nox1)
    a("s_waitcnt vmcnt(0)")
    a("s_barrier")
    a(f"""
v_lshrrev_b32 v5, 4, v1
v_lshlrev_b32 v5, 3, v5
v_bfe_u32 v6, v1, 2, 2
v_add_u32 v5, v5, v6
v_lshlrev_b32 v7, 6, v5
v_lshlrev_b32 v5, 7, v5
v_and_b32 v6, 3, v1
v_lshlrev_b32 v6, 3, v6
s_lshl_b32 s{T0}, s{S_W}, 5
v_add3_u32 v5, v5, v6, s{T0}
s_and_b32 s{T0}, s{S_W}, 1
s_lshl_b32 s{T0}, s{T0}, 5
s_lshr_b32 s{T1}, s{S_W}, 1
s_mul_i32 s{T1}, s{T1}, 49152
s_add_u32 s{T0}, s{T0}, s{T1}
v_add3_u32 v7, v7, v6, s{T0}
""")
    for m in range(2):
        for kk in range(20):
            if kk % 8 == 0:
                a(f"v_add_u32 v6, {m*81920 + kk*4096}, v5")
            for h in range(2):
                r = (m * 20 + kk) * 4 + 2 * h
                a(f"ds_read_b64_tr_b16 a[{r}:{r+1}], v6 offset:{(kk%8)*4096 + h*512}")
            if kk % 4 == 3: a("s_waitcnt lgkmcnt(0)")
    a("s_barrier")
    nowd = a.uid("nowd")
    a(f"""
s_cmp_ge_u32 s{S_ID}, 20
s_cbranch_scc1 {nowd}
v_lshrrev_b32 v4, 2, v1
v_mul_u32_u24 v4, 1280, v4
v_and_b32 v6, 3, v1
v_lshlrev_b32 v6, 4, v6
v_add_u32 v4, v4, v6
s_lshl_b32 s{S_GO}, s{S_ID}, 6
s_mul_i32 s{T0}, s{S_W}, {384*1280}
s_add_u32 s{S_GO}, s{S_GO}, s{T0}
s_mul_i32 s{S_LW}, s{S_W}, 24576
""")
    for q in range(24):
        a(f"s_add_u32 m0, s{S_LW}, {q*1024}")
        a(f"s_add_u32 s{S_OFF}, s{S_GO}, {q*16*1280}")
        a(f"buffer_load_dwordx4 v4, s[{S_D0}:{S_D0+3}], s{S_OFF} offen lds")
    a.label(nowd)
    dbg_wait(a, DBG_X1, 16, fail)
    a(f"v_lshlrev_b32 v4, 4, v1")
    for i in range(8):
        a(f"s_mov_b32 s{T0}, {R_OFF + i*1024}")
        a(f"buffer_load_dwordx4 v[{16+4*i}:{19+4*i}], v4, {WS}, s{T0} offen sc1")
    a("s_waitcnt vmcnt(0)")
    a("s_barrier")
    a(f"s_mov_b32 s{T2}, -1")
    for rnd in range(8):
        for i in range(32):
            a(f"v_sub_u32 v{48+i}, s{T2}, v{16+i}")
        a(f"v_min3_u32 v48, v48, v49, v50")
        for i in range(3, 31, 2):
            a(f"v_min3_u32 v48, v48, v{48+i}, v{49+i}")
        a(f"v_min_u32 v48, v48, v79")
        for pm in ("quad_perm:[1,0,3,2]", "quad_perm:[2,3,0,1]", "row_half_mirror", "row_mirror"):
            a("s_nop 1")
            a(f"v_min_u32_dpp v48, v48, v48 {pm} row_mask:0xf bank_mask:0xf")
        a(f"""
s_nop 0
v_readlane_b32 s{T0}, v48, 0
v_readlane_b32 s{T1}, v48, 16
s_min_u32 s{T0}, s{T0}, s{T1}
v_readlane_b32 s{T1}, v48, 32
s_min_u32 s{T0}, s{T0}, s{T1}
v_readlane_b32 s{T1}, v48, 48
s_min_u32 s{T0}, s{T0}, s{T1}
s_sub_u32 s{S_K+rnd}, s{T2}, s{T0}
s_sub_u32 s{T2}, s{S_K+rnd}, 1
s_nop 0
""")
    a(f"v_and_b32 v9, 7, v1")
    a(f"v_mov_b32 v8, s{S_K}")
    for i in range(1, 8):
        a(f"v_cmp_eq_u32 vcc, {i}, v9")
        a(f"v_mov_b32 v10, s{S_K+i}")
        a("s_nop 0")
        a(f"v_cndmask_b32 v8, v8, v10, vcc")
    a(f"""
v_and_b32 v8, 0x7ff, v8
v_sub_u32 v8, 2047, v8            ; token
v_mul_u32_u24 v8, 1280, v8
v_lshrrev_b32 v10, 4, v1
v_lshlrev_b32 v10, 4, v10
v_add_u32 v8, v8, v10
""")
    for kk in range(20):
        a(f"buffer_load_dwordx4 v[{16+4*kk}:{19+4*kk}], v8, {X_}, 0 offen offset:{64*kk}")
    nowd2 = a.uid("nowd2")
    a(f"s_cmp_ge_u32 s{S_ID}, 20")
    a(f"s_cbranch_scc1 {nowd2}")
    for ks in range(24):
        for h in range(2):
            r = 160 + ks * 4 + 2 * h
            a(f"ds_read_b64_tr_b16 a[{r}:{r+1}], v7 offset:{ks*2048 + h*256}")
        if ks % 4 == 3: a("s_waitcnt lgkmcnt(0)")
    a.label(nowd2)
    a("s_waitcnt vmcnt(0)")
    for kk in range(20):
        for m in range(2):
            d = 96 + 4 * m; wf = (m * 20 + kk) * 4
            c = "0" if kk == 0 else f"v[{d}:{d+3}]"
            a(f"v_mfma_f32_16x16x32_bf16 v[{d}:{d+3}], v[{16+4*kk}:{19+4*kk}], a[{wf}:{wf+3}], {c}")
    a(f"""
v_bfe_u32 v9, v1, 4, 1
v_mul_u32_u24 v9, {4*3072}, v9
v_and_b32 v10, 15, v1
v_lshlrev_b32 v10, 1, v10
v_add_u32 v9, v9, v10
s_lshl_b32 s{T0}, s{S_ID}, 7
s_lshl_b32 s{T1}, s{S_W}, 5
s_add_u32 s{T0}, s{T0}, s{T1}
s_add_u32 s{S_OFF}, s{T0}, {H_OFF}
""")
    for r in range(4):
        rbf(a, 104, 96 + r)
        sigmoid(a, 105, 104, S_NL)
        a(f"v_mul_f32 v104, v104, v105")
        rbf(a, 104, 104)
        rbf(a, 105, 100 + r)
        a(f"v_mul_f32 v104, v104, v105")
        a(f"v_cvt_pk_bf16_f32 v{108+r}, v104, v104")
    a("s_mov_b32 exec_hi, 0")
    for r in range(4):
        a(f"buffer_store_short v{108+r}, v9, {WS}, s{S_OFF} offen sc1")
        a(f"s_add_u32 s{S_OFF}, s{S_OFF}, 3072")
    a("s_mov_b64 exec, -1")
    dbg_signal(a, DBG_X2)
    a(f"s_cmp_ge_u32 s{S_ID}, 20")
    a(f"s_cbranch_scc1 {fail}")
    a(f"v_bfe_u32 v9, v1, 4, 1")
    a(f"v_cmp_eq_u32 vcc, 1, v9")
    for r in range(4):
        a(f"v_mov_b32 v{120+r}, s{S_K+r}")
        a(f"v_mov_b32 v10, s{S_K+4+r}")
        a(f"v_cndmask_b32 v{120+r}, v{120+r}, v10, vcc")
    a(f"""
s_lshl_b32 s{T0}, s{S_ID}, 6
s_and_b32 s{T1}, s{S_W}, 1
s_lshl_b32 s{T1}, s{T1}, 5
s_add_u32 s{T3}, s{T0}, s{T1}
v_and_b32 v10, 15, v1
v_lshlrev_b32 v10, 1, v10            ; c*2
""")
    for r in range(4):
        a(f"""
v_and_b32 v{124+r}, 0x7ff, v{120+r}
v_sub_u32 v{124+r}, 2047, v{124+r}           ; token
v_mul_u32_u24 v11, 1280, v{124+r}
v_add_u32 v11, v11, v10
buffer_load_ushort v{128+r}, v11, {X_}, s{T3} offen
v_lshlrev_b32 v11, 2, v{124+r}
v_add_u32 v11, {G_OFF}, v11
buffer_load_dword v{132+r}, v11, {WS}, 0 offen sc1
v_and_b32 v{120+r}, 0xffff0000, v{120+r}
v_not_b32 v11, v{120+r}
v_ashrrev_i32 v11, 31, v11
v_or_b32 v11, 0x80000000, v11
v_xor_b32 v{120+r}, v{120+r}, v11
v_and_b32 v{120+r}, 0xffff0000, v{120+r}
""")
        sigmoid(a, 120 + r, 120 + r, S_NL)
        rbf(a, 120 + r, 120 + r)
    dbg_wait(a, DBG_X2, 24, fail)
    a(f"""
v_and_b32 v9, 7, v1
v_mul_u32_u24 v9, 3072, v9
v_lshrrev_b32 v11, 4, v1
v_lshlrev_b32 v11, 4, v11
v_add_u32 v9, v9, v11
s_lshr_b32 s{T0}, s{S_W}, 1
s_mul_i32 s{T0}, s{T0}, 1536
s_add_u32 s{T0}, s{T0}, {H_OFF}
""")
    for ks in range(24):
        a(f"buffer_load_dwordx4 v[{16+4*ks}:{19+4*ks}], v9, {WS}, s{T0} offen offset:{64*ks} sc1")
    a("s_waitcnt vmcnt(0)")
    for ks in range(24):
        c = "0" if ks == 0 else "v[112:115]"
        a(f"v_mfma_f32_16x16x32_bf16 v[112:115], v[{16+4*ks}:{19+4*ks}], a[{160+4*ks}:{163+4*ks}], {c}")
    a(f"""
s_and_b32 s{T0}, s{S_W}, 1
s_lshl_b32 s{T0}, s{T0}, 10
v_lshlrev_b32 v9, 4, v1
v_add_u32 v9, s{T0}, v9
s_nop 4
s_barrier
s_cmp_lt_u32 s{S_W}, 2
s_cbranch_scc1 L_x4_lo
ds_write_b128 v9, v[112:115]
s_waitcnt lgkmcnt(0)
s_barrier
s_branch L_x4_sig
L_x4_lo:
s_barrier
ds_read_b128 v[116:119], v9
s_waitcnt lgkmcnt(0)
s_lshr_b32 s{T0}, s{T3}, 5           ; j
s_lshl_b32 s{T0}, s{T0}, 10
s_add_u32 s{T0}, s{T0}, {BASE}
s_mov_b32 s{T1}, 40960
""")
    for r in range(4):
        a(f"v_add_f32 v{112+r}, v{112+r}, v{116+r}")
        rbf(a, 112 + r, 112 + r)
        a(f"v_mul_f32 v{112+r}, v{112+r}, v{120+r}")
        rbf(a, 112 + r, 112 + r)
        a(f"v_lshlrev_b32 v{128+r}, 16, v{128+r}")
        a(f"v_add_f32 v{112+r}, v{112+r}, v{128+r}")
        rbf(a, 112 + r, 112 + r)
        a(f"v_sub_f32 v{132+r}, 1.0, v{132+r}")
        rbf(a, 132 + r, 132 + r)
        a(f"v_mul_f32 v{112+r}, v{112+r}, v{132+r}")
        a(f"v_cvt_pk_bf16_f32 v{112+r}, v{112+r}, v{112+r}")
        a(f"""
v_lshrrev_b32 v11, 5, v{124+r}
v_mul_lo_u32 v11, v11, s{T1}
v_and_b32 v{124+r}, 31, v{124+r}
v_lshlrev_b32 v{124+r}, 5, v{124+r}
v_add3_u32 v{124+r}, v{124+r}, v11, v10
""")
    a("s_mov_b32 exec_hi, 0")
    for r in range(4):
        a(f"buffer_store_short v{112+r}, v{124+r}, {WS}, s{T0} offen sc1")
    a("s_mov_b64 exec, -1")
    a("L_x4_sig:")
    dbg_signal(a, DBG_X3)
    stamp(a, 3)
    a("s_endpgm")
```

```python
import sys
from asmlib import *
from layout import *
import roles_bulk
from roles_bulk import *
from roles_chain import *
NAME = "gated_mix__memory_aug_recurrent_mem_tr__moe_arch_mod__prompt_kernel"

def prologue(a, nwg):
    a(f"""
s_cmp_ge_u32 s2, {nwg}
s_cbranch_scc1 L_end
s_load_dwordx2 s[{S_WS}:{S_WS+1}], s[0:1], 120
s_load_dwordx2 s[{S_DBG}:{S_DBG+1}], s[0:1], 112
v_lshrrev_b32 v1, 6, v0
s_mov_b32 s{S_WS+2}, {WS_USED}
s_mov_b32 s{S_WS+3}, 0x20000
v_readfirstlane_b32 s{S_W}, v1
s_mov_b32 s{S_DBG+2}, 256
s_mov_b32 s{S_DBG+3}, 0x20000
v_and_b32 v1, 63, v0
s_getreg_b32 s{T0}, hwreg(HW_REG_XCC_ID, 2, 1)
s_waitcnt lgkmcnt(0)
s_add_u32 s{S_WS}, s{S_WS}, 0x1fffff
s_addc_u32 s{S_WS+1}, s{S_WS+1}, 0
s_and_b32 s{S_WS}, s{S_WS}, 0xffe00000
""")
def tickets(a, nwg):
    a(f"""
s_cmp_lg_u32 s{S_W}, 0
s_cbranch_scc1 L_tk_wait
s_lshl_b32 s{T1}, s{T0}, 2
v_mov_b32 v2, s{T1}
v_mov_b32 v3, 1
s_mov_b64 exec, 1
buffer_atomic_add v3, v2, s[{S_DBG}:{S_DBG+3}], 0 offen sc0 sc1
s_waitcnt vmcnt(0)
v_mov_b32 v4, 0
ds_write_b32 v4, v3
s_waitcnt lgkmcnt(0)
s_mov_b64 exec, -1
L_tk_wait:
s_barrier
v_mov_b32 v4, 0
ds_read_b32 v3, v4
s_waitcnt lgkmcnt(0)
v_readfirstlane_b32 s{S_ROLE}, v3
s_sub_u32 s{T1}, {nwg-1}, s{S_ROLE}
s_cmp_eq_u32 s{T0}, 0
s_cselect_b32 s{S_ROLE}, s{S_ROLE}, s{T1}
s_mov_b32 s3, s{S_ROLE}
s_barrier
""")
def dispatch(a, bulk):
    a(f"""
s_cmp_ge_u32 s{S_ROLE}, 128
s_cbranch_scc1 {'L_bulk' if bulk else 'L_end'}
s_sub_u32 s{S_ID}, s{S_ROLE}, {NCHAIN}
s_cmp_ge_u32 s{S_ROLE}, {NCHAIN}
s_cbranch_scc1 L_x
s_sub_u32 s{S_ID}, s{S_ROLE}, {NQ+NV}
s_cmp_ge_u32 s{S_ROLE}, {NQ+NV}
s_cbranch_scc1 L_r
s_sub_u32 s{S_ID}, s{S_ROLE}, {NQ}
s_cmp_ge_u32 s{S_ROLE}, {NQ}
s_cbranch_scc1 L_cv
s_mov_b32 s{S_ID}, s{S_ROLE}
""")

def gen(path, merged, stamps=False):
    roles_bulk.STAMPS = stamps
    roles_bulk.MERGED = merged
    roles_bulk.NREADY = 232 if merged else 104
    a = Asm()
    hdr = open("gated_mix__memory_aug_recurrent_mem_tr__moe_arch_mod__prompt.s.ref").read().split("; Override")[0]
    a.lines.append(hdr.rstrip())
    if merged:
        a.lines.append("; @launch grid=(256,1,1) block=(256,1,1) lds=163840")
    else:
        a.lines.append("; @launch kernel=bulk_kernel grid=(128,1,1) block=(256,1,1) lds=163840")
        a.lines.append(f"; @launch kernel={NAME} grid=(256,1,1) block=(256,1,1) lds=163840")
    a.lines.append(HEADER + kernel_begin(NAME))
    prologue(a, 256); tickets(a, 256); dispatch(a, merged)
    role_cq(a, "L_end")
    a("L_end:\ns_endpgm")
    a("L_cv:"); role_cv(a, "L_end2")
    a("L_end2:\ns_endpgm")
    a("L_r:"); role_r(a, "L_end2")
    a("L_x:"); role_x(a, "L_end3")
    a("L_end3:\ns_endpgm")
    if merged:
        a(f"""
L_bulk:
s_and_b32 s{S_ID}, s{S_ROLE}, 31
s_bfe_u32 s{S_X}, s{S_ROLE}, 0x20005
s_cmp_eq_u32 s{S_X}, 3
s_cbranch_scc1 L_bu
""")
        role_proj(a)
        a("L_bu:"); role_bu(a, "L_end3")
    a.lines.append(kernel_desc(NAME, 512, 256, 96))
    if not merged:
        a.lines.append(kernel_begin("bulk_kernel"))
        b = Asm(); b._uid = 100000
        prologue(b, 128)
        t = b.text().replace("L_end", "LB_end"); b.lines = [t.rstrip()]
        b(f"""
s_add_u32 s3, s2, 128
s_and_b32 s{S_ID}, s2, 31
s_lshr_b32 s{S_X}, s2, 5
s_cmp_eq_u32 s{S_X}, 3
s_cbranch_scc1 LB_bu
""")
        role_proj(b)
        b("LB_bu:"); role_bu(b, "LB_end")
        b("LB_end:\ns_endpgm")
        a.lines += b.lines
        a.lines.append(kernel_desc("bulk_kernel", 512, 256, 96))
    open(path, "w").write(a.text())

if __name__ == "__main__":
    gen(sys.argv[1], "merged" in sys.argv, "stamps" in sys.argv)
```
